```python
import torch

def _softmax(x, axis=-1):
    return torch.softmax(x, dim=axis)
def _gelu(x):
    return torch.nn.functional.gelu(x, approximate="tanh")
def _silu(x):
    return torch.nn.functional.silu(x)
def _sigmoid(x):
    return torch.sigmoid(x)
def _layernorm(x, axis=-1, eps=1e-5):
    m = x.mean(dim=axis, keepdim=True)
    v = x.var(dim=axis, keepdim=True, unbiased=False)
    return (x - m) / torch.sqrt(v + eps)
def _scatter_add(tgt, idx, src, axis=0):
    return tgt.clone().index_add_(axis, idx, src)
def _segment_sum(src, seg, n):
    out = torch.zeros((n,) + src.shape[1:], dtype=src.dtype)
    return out.index_add_(0, seg, src)
def _pad(x, pw):
    flat = tuple(v for pair in reversed(pw) for v in pair)
    return torch.nn.functional.pad(x, flat)

kernel_name = 'recurrent_scan__ssm_conv_h3__glu_gated_bilinear__prompt'

def setup_inputs():

    _w = (lambda a: (lambda t: t.to(torch.bfloat16) if t.is_floating_point() else t)(torch.as_tensor(a)))
    def _A_setup():
        B, S, D = 1, 2048, 576
        ks = 4
        return {
            "q": _w((lambda *s: torch.randn(*s, dtype=torch.bfloat16) * 0.05)(B, S, D)),
            "k": _w((lambda *s: torch.randn(*s, dtype=torch.bfloat16) * 0.8)(B, S, D)),
            "v": _w((lambda *s: torch.randn(*s, dtype=torch.bfloat16) * 0.8)(B, S, D)),
            "shift_k": _w((lambda *s: torch.randn(*s, dtype=torch.bfloat16) * 0.8)(D, ks) * 0.5),
            "ssm_k": _w((lambda *s: torch.randn(*s, dtype=torch.bfloat16) * 0.8)(D, S) * (1.0 / S ** 0.5)),
            "ssm_D": _w((lambda *s: torch.randn(*s, dtype=torch.bfloat16) * 0.8)(D)),
        }
    _A_in = _A_setup()

    def _B_setup():
        B, S, D, F = 1, 2048, 576, 4608
        return {
            "x": _w((lambda *s: torch.randn(*s, dtype=torch.bfloat16) * 0.05)(B, S, D)),
            "w_gate": _w((lambda *s: torch.randn(*s, dtype=torch.bfloat16) * 0.2)(D, F) * (D ** -0.5)),
            "w_up": _w((lambda *s: torch.randn(*s, dtype=torch.bfloat16) * 0.2)(D, F) * (D ** -0.5)),
            "w_down": _w((lambda *s: torch.randn(*s, dtype=torch.bfloat16) * 0.2)(F, D) * (F ** -0.5)),
        }
    _B_in = _B_setup()

    return {
        "A_q": _A_in["q"],
        "A_k": _A_in["k"],
        "A_v": _A_in["v"],
        "A_shift_k": _A_in["shift_k"],
        "A_ssm_k": _A_in["ssm_k"],
        "A_ssm_D": _A_in["ssm_D"],
        "B_x": _B_in["x"],
        "B_w_gate": _B_in["w_gate"],
        "B_w_up": _B_in["w_up"],
        "B_w_down": _B_in["w_down"],
    }

def reference(A_q, A_k, A_v, A_shift_k, A_ssm_k, A_ssm_D, B_x, B_w_gate, B_w_up, B_w_down):
    def _A_ref(q, k, v, shift_k, ssm_k, ssm_D):
        B, S, D = q.shape
        ks = shift_k.shape[-1]
        k_pad = _pad(k, ((0, 0), (ks - 1, 0), (0, 0)))
        k_shift = torch.zeros_like(k)
        for t in range(ks):
            k_shift = k_shift + k_pad[:, t:t + S, :] * shift_k[:, ks - 1 - t][None, None, :]
        kv = k_shift * v
        L = 2 * S
        kv_pad = _pad(kv, ((0, 0), (0, S), (0, 0)))
        kf_pad = _pad(ssm_k, ((0, 0), (0, S)))
        kv_f = (lambda x, axes=(-2,-1): torch.fft.rfft2(x.float(), dim=axes))(kv_pad[:, None, :, :], axes=(1, 2))
        kf_f = (lambda x, axes=(-2,-1): torch.fft.rfft2(x.float(), dim=axes))(kf_pad[:, None, :], axes=(1, 2))
        kf_f = (lambda x, *d: x.permute(*d))(kf_f, 1, 2, 0)
        y_f = kv_f * kf_f[None, :, :, :]
        y = (lambda x, s, axes=(-2,-1): torch.fft.irfft2(x, s=s, dim=axes).to(torch.bfloat16))(y_f, (1, L), axes=(1, 2))[:, 0, :S, :]
        y = y + kv * ssm_D[None, None, :]
        return q * y

    def _B_ref(x, w_gate, w_up, w_down):
        g = torch.einsum("bsd,df->bsf", x, w_gate)
        u = torch.einsum("bsd,df->bsf", x, w_up)
        h = g * u
        return torch.einsum("bsf,fd->bsd", h, w_down)

    x = A_q
    xn = _layernorm(x, axis=-1)
    s = _A_ref(xn, A_k, A_v, A_shift_k, A_ssm_k, A_ssm_D)
    g = _silu(_B_ref(xn, B_w_gate, B_w_up, B_w_down))
    return x + s * g
```

```python
class Asm:
    def __init__(self):
        self.L = []
        self.vm = []
        self.nlab = 0
        self.lg = []
    def __call__(self, s):
        if isinstance(s, (list, tuple)):
            for x in s: self(x)
        else:
            self.L.append(s)
    def c(self, s):
        self.L.append("; " + s)
    def label(self, base="L"):
        self.nlab += 1
        return f"{base}_{self.nlab}"
    def vmem(self, instr, tag):
        return ("VM", instr, tag)
    def waitvm(self, tag):
        return ("WVM", tag)
    def lds(self, instr, tag):
        return ("LG", instr, tag)
    def waitlg(self, tag):
        return ("WLG", tag)
    def emit(self, item):
        if isinstance(item, str):
            self.L.append(item)
        elif isinstance(item, list):
            for x in item: self.emit(x)
        elif item[0] == "VM":
            self.L.append(item[1]); self.vm.append(item[2])
        elif item[0] == "WVM":
            tags = item[1] if isinstance(item[1], (list, set)) else [item[1]]
            last = -1
            for n, t in enumerate(self.vm):
                if t in tags: last = n
            assert last >= 0, f"wait for never issued {tags}"
            n = len(self.vm) - 1 - last
            self.L.append(f"s_waitcnt vmcnt({min(n, 63)})")
        elif item[0] == "LG":
            self.L.append(item[1]); self.lg.append(item[2])
        elif item[0] == "WLG":
            tags = item[1] if isinstance(item[1], (list, set)) else [item[1]]
            last = -1
            for n, t in enumerate(self.lg):
                if t in tags: last = n
            assert last >= 0, f"lgkm wait for never issued {tags}"
            n = len(self.lg) - 1 - last
            self.L.append(f"s_waitcnt lgkmcnt({min(n, 15)})")
        else:
            raise ValueError(item)
    def text(self):
        return "\n".join(self.L) + "\n"

def srd(a, d, ptr, nbytes, off=None):
    if off is None:
        a(f"s_mov_b32 s{d}, s{ptr}"); a(f"s_mov_b32 s{d+1}, s{ptr+1}")
    else:
        a(f"s_add_u32 s{d}, s{ptr}, {off}"); a(f"s_addc_u32 s{d+1}, s{ptr+1}, 0")
    a(f"s_mov_b32 s{d+2}, {nbytes}"); a(f"s_mov_b32 s{d+3}, 0x20000")

def head(a, name):
    a(".text"); a(f".globl {name}"); a(".p2align 8"); a(f".type {name},@function"); a(f"{name}:")

def kdesc(name, vgpr, accum, sgpr=100):
    return f""".section .rodata,"a"
.p2align 6
.amdhsa_kernel {name}
  .amdhsa_next_free_vgpr {vgpr}
  .amdhsa_next_free_sgpr {sgpr}
  .amdhsa_accum_offset {accum}
  .amdhsa_group_segment_fixed_size 0
  .amdhsa_kernarg_size 104
  .amdhsa_user_sgpr_count 2
  .amdhsa_user_sgpr_kernarg_segment_ptr 1
  .amdhsa_system_sgpr_workgroup_id_x 1
  .amdhsa_float_denorm_mode_32 3
.end_amdhsa_kernel
"""

def interleave(a, mfmas, placed):
    for it in placed.get(-1, []): a.emit(it)
    for n, m in enumerate(mfmas):
        a(m)
        for it in placed.get(n, []): a.emit(it)

def cost(item):
    if isinstance(item, list): return sum(cost(x) for x in item)
    return 1

class Gaps:
    def __init__(self, n, cap=2):
        self.n = n; self.cap = cap
        self.g = {i: [] for i in range(-1, n)}
        self.load = [0]*n
    def put(self, i, item):
        self.g[i].append(item)
        if i >= 0: self.load[i] += cost(item)
    def put_free(self, items, lo, hi, cap=None):
        cap = cap or self.cap
        items = list(items)
        if not items: return
        pos = lo
        span = hi - lo + 1
        for k, it in enumerate(items):
            target = lo + (k*span)//len(items)
            pos = max(pos, target)
            p = pos
            while p <= hi and self.load[p] + cost(it) > cap: p += 1
            if p > hi:
                p = min(range(pos, hi+1), key=lambda z: self.load[z])
            self.put(p, it); pos = p
```

```python
import sys
from asmlib import *

WS_XN, WS_UR, WS_ZT, WS_H, WS_PART = 0x0, 0x400000, 0x800000, 0x1000000, 0x3000000
SZ_XN, SZ_UR, SZ_ZT, SZ_H, SZ_PART = 2359296, 2359296, 2359296, 18874368, 9437184
SZ_X = 2359296
SZ_W = 5308416
ST = "sc1"

def wave_lane(a, vlane, swave, tmp):
    a(f"v_lshrrev_b32 v{tmp}, 6, v0")
    a(f"v_and_b32 v{vlane}, 63, v0")
    a(f"v_readfirstlane_b32 s{swave}, v{tmp}")
    a("s_nop 3")

def wg_map(a):
    a("s_and_b32 s44, s2, 7"); a("s_lshr_b32 s45, s2, 3")
    a("s_and_b32 s41, s44, 3")
    a("s_lshr_b32 s44, s44, 2"); a("s_lshl_b32 s44, s44, 3")
    a("s_lshr_b32 s40, s45, 2"); a("s_add_u32 s40, s40, s44")
    a("s_and_b32 s42, s45, 3")
    a("s_lshl_b32 s43, s41, 2"); a("s_add_u32 s43, s43, s42")

def k0(a):
    head(a, "prep_kernel")
    a("s_cmp_ge_u32 s2, 272"); a("s_cbranch_scc1 PREP_END")
    a("s_load_dwordx4 s[4:7], s[0:1], 0")
    a("s_load_dwordx4 s[8:11], s[0:1], 16")
    a("s_load_dwordx2 s[12:13], s[0:1], 96")
    wave_lane(a, 1, 14, 2)
    a("s_waitcnt lgkmcnt(0)")
    a("s_cmp_ge_u32 s2, 128"); a("s_cbranch_scc1 PREP_KV")
    srd(a, 16, 4, SZ_X)
    srd(a, 20, 12, SZ_XN, WS_XN if WS_XN else None)
    a("v_and_b32 v2, 15, v1")
    a("v_lshrrev_b32 v3, 4, v1")
    a("s_lshl_b32 s24, s2, 4")
    a("v_add_u32 v4, s24, v2")
    a("s_movk_i32 s25, 1152")
    a("v_mul_lo_u32 v4, v4, s25")
    a("v_lshl_add_u32 v4, v3, 4, v4")
    a("s_lshl_b32 s26, s14, 6")
    a("v_add_u32 v4, s26, v4")
    for n in range(4): a(f"v_mov_b32 v{24+n}, 0")
    for n in range(4): a(f"buffer_load_dwordx4 v[{8+4*n}:{11+4*n}], v4, s[16:19], 0 offen offset:{256*n}")
    a("s_cmp_ge_u32 s14, 2"); a("s_cbranch_scc1 PREP_L1")
    a("buffer_load_dwordx4 v[24:27], v4, s[16:19], 0 offen offset:1024")
    a("PREP_L1:")
    a("v_mov_b32 v6, 0"); a("v_mov_b32 v7, 0")
    a("s_waitcnt vmcnt(0)")
    for d in range(20):
        lo, hi = 32+2*d, 33+2*d
        a(f"v_lshlrev_b32 v{lo}, 16, v{8+d}")
        a(f"v_and_b32 v{hi}, 0xffff0000, v{8+d}")
        a(f"v_add_f32 v6, v6, v{lo}"); a(f"v_fmac_f32 v7, v{lo}, v{lo}")
        a(f"v_add_f32 v6, v6, v{hi}"); a(f"v_fmac_f32 v7, v{hi}, v{hi}")
    a("s_lshl_b32 s26, s14, 5")
    a("v_lshlrev_b32 v5, 7, v2"); a("v_lshl_add_u32 v72, v3, 3, v5"); a("v_add_u32 v72, s26, v72")
    a("ds_write_b64 v72, v[6:7]")
    a("s_waitcnt lgkmcnt(0)"); a("s_barrier")
    for n in range(8): a(f"ds_read_b128 v[{76+4*n}:{79+4*n}], v5 offset:{16*n}")
    a("s_waitcnt lgkmcnt(0)")
    a("v_add_f32 v6, v76, v78"); a("v_add_f32 v7, v77, v79")
    for n in range(1, 8):
        a(f"v_add_f32 v6, v6, v{76+4*n}"); a(f"v_add_f32 v7, v7, v{77+4*n}")
        a(f"v_add_f32 v6, v6, v{78+4*n}"); a(f"v_add_f32 v7, v7, v{79+4*n}")
    a("v_mov_b32 v73, 0x3ae38e39")
    a("v_mul_f32 v6, v6, v73")
    a("v_mul_f32 v7, v7, v73")
    a("v_fma_f32 v7, -v6, v6, v7")
    a("v_max_f32 v7, 0, v7")
    a("v_add_f32 v7, 0x3727c5ac, v7")
    a("v_rsq_f32 v7, v7")
    a("s_nop 0")
    a("v_mul_f32 v6, v6, v7")
    a("v_lshlrev_b32 v74, 4, v1")
    a("s_mul_i32 s26, s2, 18"); a("s_add_u32 s26, s26, s14"); a("s_lshl_b32 s26, s26, 10")
    for n in range(5):
        if n == 4:
            a("s_cmp_ge_u32 s14, 2"); a("s_cbranch_scc1 PREP_END")
        for d in range(4):
            lo, hi = 32+2*(4*n+d), 33+2*(4*n+d)
            a(f"v_fma_f32 v{lo}, v{lo}, v7, -v6"); a(f"v_fma_f32 v{hi}, v{hi}, v7, -v6")
            a(f"v_cvt_pk_bf16_f32 v{8+4*n+d}, v{lo}, v{hi}")
        a(f"buffer_store_dwordx4 v[{8+4*n}:{11+4*n}], v74, s[20:23], s26 offen {ST}")
        a("s_add_u32 s26, s26, 4096")
    a("s_branch PREP_END")
    a("PREP_KV:")
    srd(a, 16, 6, SZ_X); srd(a, 20, 8, SZ_X); srd(a, 24, 10, 4608); srd(a, 28, 12, SZ_UR, WS_UR)
    a("s_sub_u32 s32, s2, 128"); a("s_lshl_b32 s32, s32, 2"); a("s_add_u32 s32, s32, s14")
    a("s_mul_i32 s33, s32, 3641"); a("s_lshr_b32 s33, s33, 16")
    a("s_mul_i32 s34, s33, 18"); a("s_sub_u32 s34, s32, s34")
    a("v_and_b32 v2, 15, v1"); a("v_lshrrev_b32 v3, 4, v1")
    a("s_lshl_b32 s35, s33, 6")
    a("v_lshl_add_u32 v4, v2, 2, s35")
    a("s_lshl_b32 s36, s34, 2"); a("v_add_u32 v5, s36, v3")
    a("s_movk_i32 s37, 1152")
    a("v_mul_lo_u32 v6, v4, s37"); a("v_lshl_add_u32 v6, v5, 4, v6")
    a("v_subrev_u32 v7, 3456, v6")
    for r in range(3): a(f"buffer_load_dwordx4 v[{16+4*r}:{19+4*r}], v7, s[16:19], 0 offen offset:{1152*r}")
    for r in range(4): a(f"buffer_load_dwordx4 v[{28+4*r}:{31+4*r}], v6, s[16:19], 0 offen offset:{1152*r}")
    for r in range(4): a(f"buffer_load_dwordx4 v[{44+4*r}:{47+4*r}], v6, s[20:23], 0 offen offset:{1152*r}")
    a("v_lshlrev_b32 v8, 6, v5")
    for r in range(4): a(f"buffer_load_dwordx4 v[{60+4*r}:{63+4*r}], v8, s[24:27], 0 offen offset:{16*r}")
    a("v_lshlrev_b32 v9, 15, v5"); a("v_lshlrev_b32 v10, 1, v4"); a("v_sub_u32 v9, v9, v10"); a("v_add_u32 v9, 4088, v9")
    a("s_waitcnt vmcnt(0)")
    def unp(dst, src, half):
        return f"v_and_b32 v{dst}, 0xffff0000, v{src}" if half else f"v_lshlrev_b32 v{dst}, 16, v{src}"
    for e in range(8):
        d, hf = e >> 1, e & 1
        o = 80 + (e & 1)*24
        for r in range(7): a(unp(o+r, 16+4*r+d, hf))
        for r in range(4): a(unp(o+7+r, 44+4*r+d, hf))
        a(unp(o+11, 60+2*e, 0)); a(unp(o+12, 60+2*e, 1)); a(unp(o+13, 61+2*e, 0)); a(unp(o+14, 61+2*e, 1))
        for r in range(4):
            a(f"v_mul_f32 v{o+15+r}, v{o+r}, v{o+14}")
        for tap in (1, 2, 3):
            for r in range(4): a(f"v_fmac_f32 v{o+15+r}, v{o+r+tap}, v{o+14-tap}")
        for r in range(4): a(f"v_mul_f32 v{o+15+r}, v{o+15+r}, v{o+7+r}")
        a(f"v_cvt_pk_bf16_f32 v{o+20}, v{o+18}, v{o+17}")
        a(f"v_cvt_pk_bf16_f32 v{o+21}, v{o+16}, v{o+15}")
        a(f"s_mov_b32 s38, {e*4096}")
        a(f"buffer_store_dwordx2 v[{o+20}:{o+21}], v9, s[28:31], s38 offen {ST}")
    a("PREP_END:")
    a("s_endpgm")

AV0 = 224
def areg(idx):
    r = idx*4
    return f"a[{r}:{r+3}]" if r < 256 else f"v[{AV0+r-256}:{AV0+r-253}]"
B0 = 32
def breg(buf): return f"v[{B0+4*buf}:{B0+4*buf+3}]"

def k1(a):
    head(a, "gemm1_kernel")
    a("s_cmp_ge_u32 s2, 256"); a("s_cbranch_scc1 G1_END")
    a("s_load_dwordx4 s[4:7], s[0:1], 56")
    a("s_load_dwordx4 s[8:11], s[0:1], 32")
    a("s_load_dwordx2 s[12:13], s[0:1], 96")
    wave_lane(a, 1, 14, 2)
    wg_map(a)
    a("s_lshr_b32 s46, s14, 1"); a("s_and_b32 s47, s14, 1")
    a("v_lshrrev_b32 v4, 3, v1")
    a("v_bfe_u32 v5, v1, 4, 1"); a("s_lshl_b32 s48, s47, 1"); a("v_or_b32 v5, s48, v5")
    a("v_bfe_u32 v6, v1, 1, 2"); a("v_xor_b32 v5, v5, v6")
    a("s_lshl_b32 s48, s14, 3"); a("v_add_u32 v4, s48, v4")
    a("s_movk_i32 s49, 9216"); a("v_mul_lo_u32 v4, v4, s49")
    a("v_and_b32 v6, 1, v1"); a("v_lshl_add_u32 v4, v6, 4, v4")
    a("v_lshl_add_u32 v2, v5, 5, v4")
    a("v_and_b32 v6, 1, v5"); a("v_lshl_add_u32 v3, v6, 5, v4")
    a("v_lshrrev_b32 v5, 1, v5"); a("s_mov_b32 s49, %d" % (288*9216)); a("v_mul_lo_u32 v5, v5, s49"); a("v_add_u32 v3, v3, v5")
    a("v_lshrrev_b32 v5, 4, v1"); a("v_bfe_u32 v6, v1, 2, 2")
    a("v_lshlrev_b32 v4, 10, v5"); a("v_lshl_add_u32 v4, v6, 7, v4")
    a("v_and_b32 v5, 1, v5"); a("v_lshlrev_b32 v5, 1, v5"); a("v_lshrrev_b32 v6, 1, v6"); a("v_or_b32 v5, v5, v6")
    a("v_lshl_add_u32 v4, v5, 5, v4")
    a("v_and_b32 v5, 3, v1"); a("v_lshl_add_u32 v4, v5, 3, v4")
    a("s_lshl_b32 s48, s47, 6")
    a("v_xor_b32 v8, s48, v4"); a("v_xor_b32 v9, 32, v8")
    for rg in (1, 2):
        a(f"v_add_u32 v{8+2*rg}, {rg*49152}, v8"); a(f"v_add_u32 v{9+2*rg}, {rg*49152}, v9")
    for v in range(4):
        a(f"v_xor_b32 v{14+v}, {32*v}, v4") if v else a("v_mov_b32 v14, v4")
        a(f"v_add_u32 v{18+v}, 49152, v{14+v}")
    a("v_lshlrev_b32 v7, 4, v1")
    a("s_waitcnt lgkmcnt(0)")
    srd(a, 16, 4, SZ_W); srd(a, 20, 6, SZ_W)
    srd(a, 24, 12, SZ_XN, WS_XN if WS_XN else None)
    srd(a, 28, 12, SZ_H, WS_H)
    a("s_lshl_b32 s48, s40, 3"); a("s_lshl_b32 s49, s46, 2"); a("s_add_u32 s48, s48, s49")
    a("s_lshl_b32 s49, s47, 1")
    a("s_mul_i32 s51, s43, 9"); a("s_add_u32 s50, s51, s47"); a("s_lshl_b32 s50, s50, 10")
    a("s_add_u32 s51, s51, 8"); a("s_lshl_b32 s51, s51, 10")
    for s in range(4):
        a(f"s_xor_b32 s60, s49, {s}"); a("s_add_u32 s60, s60, s48")
        a(f"s_mul_i32 s{52+s}, s60, 18432")
        a(f"s_mul_i32 s{56+s}, s60, 147456")
        if s < 2: a(f"s_add_u32 s{62+s}, s{56+s}, s51")
        a(f"s_add_u32 s{56+s}, s{56+s}, s50")
    a("s_mul_i32 s64, s43, 576")
    a("s_lshl_b32 s65, s14, 10")
    NST = 27
    def stage_info(t):
        if t < 24: return ("F", t//6, t % 6)
        return ("H", 4, t-24)
    def dma_items(t):
        kind, c, sl = stage_info(t)
        slot = t % 6
        it = []
        for ksl in range(3):
            ks = sl*3 + ksl
            so = ks*32*9216 + (c*128 if kind == "F" else 512)
            for mat in range(2):
                grp = []
                if mat == 0: grp.append(f"s_add_u32 s66, s64, {so}")
                grp.append(f"s_add_u32 m0, s65, {slot*24576 + ksl*8192 + mat*4096}")
                it.append(grp)
                it.append(a.vmem(f"buffer_load_dwordx4 v{2 if kind=='F' else 3}, s[{16+4*mat}:{19+4*mat}], s66 offen lds", ("W", t)))
        return it
    def x_items(grp):
        it = []
        for ks in range(3*grp, 3*grp+3):
            for s in range(4):
                if ks % 4 == 0 and ks: it.append(f"s_add_u32 s{52+s}, s{52+s}, 4096")
                it.append(a.vmem(f"buffer_load_dwordx4 {areg(ks*4+s)}, v7, s[24:27], s{52+s} offen offset:{(ks%4)*1024}", ("X", ks)))
        return it
    def flat(items):
        for it in items:
            if isinstance(it, list):
                for x in it: a.emit(x)
                if any(isinstance(x, str) and " m0," in x for x in it): a("s_nop 0")
            else: a.emit(it)
    D = 4
    for t in range(D):
        flat(dma_items(t)); flat(x_items(t))
    ACC = 64
    def frags(t):
        kind, c, sl = stage_info(t)
        slot = t % 6
        out = []
        if kind == "F":
            st = (c & 1)*64
            for n in range(12):
                ksl, b, mat = n >> 2, (n >> 1) & 1, n & 1
                ks = sl*3 + ksl
                base = 8 + 2*(slot//2) + b
                off = (slot % 2)*24576 + ksl*8192 + mat*4096
                mm = []
                for s in range(4):
                    acc = ACC + st + ((mat*2+b)*4 + s)*4
                    mm.append((acc, areg(ks*4+s), ks == 0))
                out.append(dict(base=base, off=off, mm=mm, ks=ks))
        else:
            for n in range(24):
                ksl, rng, b, mat = n >> 3, (n >> 2) & 1, (n >> 1) & 1, n & 1
                ksv = sl*3 + ksl
                ks = ksv + 9*rng
                base = 14 + 4*(slot//2) + 2*rng + b
                off = (slot % 2)*24576 + ksl*8192 + mat*4096
                mm = []
                for s in range(2):
                    acc = ACC + ((mat*2+b)*2 + s)*4
                    mm.append((acc, areg(ks*4+s), ksv == 0 and rng == 0))
                out.append(dict(base=base, off=off, mm=mm, ks=ks))
        return out
    allf = []
    for t in range(NST):
        for n, f in enumerate(frags(t)):
            f["t"] = t; f["n"] = n; allf.append(f)
    for g, f in enumerate(allf): f["g"] = g
    NB, PF = 4, 3
    def reads(f):
        b = B0 + 4*(f["g"] % NB)
        return [a.lds(f"ds_read_b64_tr_b16 v[{b}:{b+1}], v{f['base']} offset:{f['off']}", ("F", f["g"])),
                a.lds(f"ds_read_b64_tr_b16 v[{b+2}:{b+3}], v{f['base']} offset:{f['off']+512}", ("F", f["g"]))]
    def epi_items(c):
        it = []
        ns = 4 if c < 4 else 2
        st = (c & 1)*64 if c < 4 else 0
        for s in range(ns):
            T = 48 + 4*(s & 3)
            for b in range(2):
                g_ = ACC + st + ((0*2+b)*ns + s)*4
                u_ = ACC + st + ((1*2+b)*ns + s)*4
                for k in range(4): it.append(f"v_mul_f32 v{g_+k}, v{g_+k}, v{u_+k}")
                it.append(f"v_cvt_pk_bf16_f32 v{T+2*b}, v{g_}, v{g_+1}")
                it.append(f"v_cvt_pk_bf16_f32 v{T+2*b+1}, v{g_+2}, v{g_+3}")
            if c < 4:
                it.append(a.vmem(f"buffer_store_dwordx4 v[{T}:{T+3}], v7, s[28:31], s{56+s} offen offset:{(c&1)*2048} {ST}", ("HS", c)))
                if c == 1: it.append(f"s_add_u32 s{56+s}, s{56+s}, 4096")
            else:
                it.append(a.vmem(f"buffer_store_dwordx4 v[{T}:{T+3}], v7, s[28:31], s{62+s} offen {ST}", ("HS", c)))
        return it
    a.emit(a.waitvm(("W", 0))); a("s_barrier")
    for g in range(PF):
        for x in reads(allf[g]): a.emit(x)
    a.emit(a.waitvm(("X", 0))); a.emit(a.waitlg(("F", 0)))
    for t in range(NST):
        fs = [f for f in allf if f["t"] == t]
        mf = []; fstart = []
        for f in fs:
            fstart.append(len(mf))
            for acc, ar, first in f["mm"]:
                cc = "0" if first else f"v[{acc}:{acc+3}]"
                mf.append(f"v_mfma_f32_16x16x32_bf16 v[{acc}:{acc+3}], {breg(f['g'] % NB)}, {ar}, {cc}")
        G = Gaps(len(mf))
        per = len(fs[0]["mm"])
        for k, f in enumerate(fs):
            g0 = fstart[k]
            nx = f["g"] + PF
            if nx < len(allf):
                nf = allf[nx]
                r = reads(nf)
                if nf["t"] != t and nf["n"] == 0:
                    G.put(g0, [a.waitvm(("W", t+1)), "s_barrier"])
                    if per == 4: G.put(g0+1, r[0]); G.put(g0+2, r[1])
                    else: G.put(g0+1, r[0]); G.put(g0+1, r[1])
                else:
                    G.put(g0, r[0]); G.put(g0+1, r[1])
        others = []
        if t + D < NST: others += dma_items(t + D)
        if t + D < 6: pass
        kind, c, sl = stage_info(t)
        seq = []
        for it in others: seq.append(it)
        lo = 0
        G.put_free(seq, 0, len(mf)-2)
        if t in (0, 1): G.put_free(x_items(t + D), 0, len(mf)-2)
        if c >= 1 and sl in (0, 1, 2) and kind == "F" or (kind == "H" and sl in (0, 1)):
            ep = epi_items(c-1)
            nparts = 3 if kind == "F" else 2
            part = ep[len(ep)*sl//nparts: len(ep)*(sl+1)//nparts]
            G.put_free(part, 10 if sl == 0 else 0, len(mf)-1)
        for k, f in enumerate(fs):
            nx = f["g"] + 1
            if nx < len(allf):
                w = [a.waitlg(("F", nx))]
                if allf[nx]["t"] < 6 and allf[nx]["ks"] != f["ks"]: w.append(a.waitvm(("X", allf[nx]["ks"])))
                G.put(fstart[k] + per - 1, w)
        a.c(f"stage {t}")
        start = len(a.L)
        interleave(a, mf, G.g)
        fix_m0(a, start)
    a("s_nop 7"); a("s_nop 1")
    for it in epi_items(4): a.emit(it)
    a("s_cmp_ge_u32 s2, 144"); a("s_cbranch_scc1 G1_END")
    a("s_barrier")
    conv(a)
    a("G1_END:")
    a("s_endpgm")

def fix_m0(a, start):
    out = a.L[:start]
    body = a.L[start:]
    for n, ln in enumerate(body):
        out.append(ln)
        if " m0," in ln and n+1 < len(body) and body[n+1].rstrip().endswith("lds"):
            out.append("s_nop 0")
    a.L = out

def conv(a):
    CW = 21504
    HC = 4160
    UO = 4*HC
    a("s_lshl_b32 s48, s2, 2"); a("s_add_u32 s48, s48, s14")
    a("s_lshl_b32 s49, s48, 12")
    a("s_add_u32 s16, s8, s49"); a("s_addc_u32 s17, s9, 0"); a("s_mov_b32 s18, 4096"); a("s_mov_b32 s19, 0x20000")
    srd(a, 20, 12, SZ_UR, WS_UR)
    srd(a, 24, 12, SZ_ZT, WS_ZT)
    srd(a, 28, 10, 1152)
    a(f"s_mul_i32 s50, s14, {CW}")
    for s in range(4):
        a(f"s_add_u32 m0, s50, {s*HC+32}")
        a(f"s_mov_b32 s51, {2*s}")
        for k in range(4):
            a.emit(a.vmem(f"buffer_load_dwordx4 v7, s[16:19], s51 offen offset:{1024*k} lds", "CV"))
    a(f"s_add_u32 m0, s50, {UO}"); a("s_nop 0")
    for k in range(4):
        a.emit(a.vmem(f"buffer_load_dwordx4 v7, s[20:23], s49 offen offset:{1024*k} lds", "CV"))
    a("v_and_b32 v2, 15, v1"); a("v_lshrrev_b32 v3, 4, v1")
    a("v_add_u32 v4, v2, v3"); a("v_subrev_u32 v4, 16, v4"); a("v_lshlrev_b32 v4, 1, v4")
    a.emit(a.vmem("buffer_load_ushort v5, v4, s[16:19], 0 offen", "CV"))
    a("s_lshl_b32 s51, s48, 1"); a("v_mov_b32 v6, s51")
    a.emit(a.vmem("buffer_load_ushort v22, v6, s[28:31], 0 offen", "CV"))
    a(f"v_mul_u32_u24 v6, {HC}, v3"); a("v_lshl_add_u32 v6, v2, 1, v6"); a("v_add_u32 v6, s50, v6")
    a("v_mov_b32 v8, 0"); a("v_mov_b32 v9, 0")
    a("v_lshlrev_b32 v10, 3, v1"); a("v_add_u32 v10, s50, v10")
    a(f"ds_write_b64 v10, v[8:9] offset:{UO+4096}")
    a("v_lshl_add_u32 v11, v3, 3, v2"); a("v_add_u32 v11, 1, v11")
    a("v_and_b32 v12, 3, v11"); a("v_sub_u32 v11, v11, v12"); a("v_lshlrev_b32 v11, 1, v11")
    a(f"v_mul_u32_u24 v12, {HC}, v12"); a("v_add_u32 v11, v11, v12"); a("v_add_u32 v11, s50, v11")
    a("v_lshlrev_b32 v12, 4, v3"); a("v_lshlrev_b32 v13, 5, v2"); a("v_sub_u32 v12, v12, v13")
    a(f"v_add_u32 v12, {UO+4064-3584}, v12"); a("v_add_u32 v12, s50, v12")
    a("v_lshlrev_b32 v13, 5, v2"); a("v_lshl_add_u32 v13, v3, 3, v13"); a(f"v_sub_u32 v13, {UO+4088-3584}, v13"); a("v_add_u32 v13, s50, v13")
    a("v_lshlrev_b32 v14, 5, v2"); a("v_lshl_add_u32 v14, v3, 3, v14")
    a.emit(a.waitvm("CV"))
    a("ds_write_b16 v6, v5")
    a("v_lshlrev_b32 v22, 16, v22")
    a("s_waitcnt lgkmcnt(0)")
    HB = [64, 128]; GB = [96, 160]; ZA = 32
    def rd(rho):
        it = []
        hb, gb = HB[rho & 1], GB[rho & 1]
        for p in range(8):
            it.append(f"ds_read_b64 v[{hb+4*p}:{hb+4*p+1}], v11 offset:{64*rho+512*p}")
            it.append(f"ds_read_b64 v[{hb+4*p+2}:{hb+4*p+3}], v11 offset:{64*rho+512*p+8}")
            it.append(f"ds_read_b128 v[{gb+4*p}:{gb+4*p+3}], v12 offset:{64*rho+512*(7-p)}")
        return it
    for x in rd(0): a(x)
    a("s_waitcnt lgkmcnt(0)")
    for rho in range(8):
        hb, gb = HB[rho & 1], GB[rho & 1]
        mf = []
        seen = set()
        for p in range(8):
            for q in range(8-p):
                cg = p+q
                acc = ZA + 4*cg
                first = rho == 0 and cg not in seen
                seen.add(cg)
                cc = "0" if first else f"v[{acc}:{acc+3}]"
                mf.append(f"v_mfma_f32_16x16x32_bf16 v[{acc}:{acc+3}], v[{hb+4*p}:{hb+4*p+3}], v[{gb+4*q}:{gb+4*q+3}], {cc}")
        G = Gaps(len(mf))
        if rho < 7:
            G.put_free(rd(rho+1), 0, 27, cap=1)
        else:
            G.put_free([f"ds_read_b64 v[{64+2*cg}:{65+2*cg}], v13 offset:{512*(7-cg)}" for cg in range(8)], 0, 27, cap=1)
        G.put(len(mf)-1, "s_waitcnt lgkmcnt(0)")
        interleave(a, mf, G.g)
    a("s_nop 7"); a("s_nop 1")
    for cg in range(8):
        acc = ZA + 4*cg; u = 64 + 2*cg; T = 96 + 8*(cg & 1)
        a(f"v_and_b32 v{T}, 0xffff0000, v{u+1}")
        a(f"v_lshlrev_b32 v{T+1}, 16, v{u+1}")
        a(f"v_and_b32 v{T+2}, 0xffff0000, v{u}")
        a(f"v_lshlrev_b32 v{T+3}, 16, v{u}")
        for k in range(4): a(f"v_fmac_f32 v{acc+k}, v{T+k}, v22")
        a(f"v_cvt_pk_bf16_f32 v{T+4}, v{acc}, v{acc+1}"); a(f"v_cvt_pk_bf16_f32 v{T+5}, v{acc+2}, v{acc+3}")
        a.emit(a.vmem(f"buffer_store_dwordx2 v[{T+4}:{T+5}], v14, s[24:27], s49 offen offset:{512*cg} {ST}", "ZS"))

def k2(a):
    head(a, "gemm2_kernel")
    a.vm = []; a.lg = []
    a("s_cmp_ge_u32 s2, 256"); a("s_cbranch_scc1 G2_END")
    a("s_load_dwordx2 s[4:5], s[0:1], 72")
    a("s_load_dwordx2 s[12:13], s[0:1], 96")
    wave_lane(a, 1, 14, 2)
    wg_map(a)
    a("s_lshr_b32 s46, s14, 1"); a("s_and_b32 s47, s14, 1")
    for qd in range(9):
        a(f"v_add_u32 v2, {64*qd}, v1"); a("v_mul_u32_u24 v3, 3641, v2"); a("v_lshrrev_b32 v3, 16, v3")
        a("v_mul_u32_u24 v4, 18, v3"); a("v_sub_u32 v4, v2, v4")
        a("v_mul_u32_u24 v3, 1152, v3"); a(f"v_lshl_add_u32 v{8+qd}, v4, 4, v3")
        if qd & 3: a(f"v_subrev_u32 v{8+qd}, {(qd&3)*1024}, v{8+qd}")
    a("v_lshrrev_b32 v2, 2, v1"); a("v_mul_u32_u24 v2, 288, v2"); a("v_and_b32 v3, 3, v1"); a("v_lshl_add_u32 v2, v3, 3, v2")
    a("s_mul_i32 s48, s47, 9216"); a("v_add_u32 v18, s48, v2")
    for sl in range(1, 4): a(f"v_add_u32 v{18+sl}, {sl*36864}, v18")
    a("v_lshlrev_b32 v7, 4, v1")
    a("s_waitcnt lgkmcnt(0)")
    srd(a, 16, 4, SZ_W); srd(a, 24, 12, SZ_H, WS_H); srd(a, 28, 12, SZ_PART, WS_PART)
    a("s_lshl_b32 s48, s40, 3"); a("s_lshl_b32 s49, s46, 2"); a("s_add_u32 s48, s48, s49")
    a("s_lshl_b32 s49, s47, 1")
    a("s_mul_i32 s50, s41, 36"); a("s_mul_i32 s51, s47, 18"); a("s_add_u32 s50, s50, s51"); a("s_lshl_b32 s50, s50, 10")
    for s in range(4):
        a(f"s_xor_b32 s60, s49, {s}"); a("s_add_u32 s60, s60, s48")
        a(f"s_mul_i32 s{52+s}, s60, 147456"); a(f"s_add_u32 s{52+s}, s{52+s}, s50")
    a("s_mul_i32 s64, s41, 1152"); a("s_mul_i32 s60, s47, 576"); a("s_add_u32 s64, s64, s60")
    a("s_lshl_b32 s60, s46, 5"); a("s_add_u32 s64, s64, s60"); a("s_mul_i32 s64, s64, 1152")
    a("s_mul_i32 s60, s42, 288"); a("s_add_u32 s64, s64, s60")
    a("s_mul_i32 s65, s14, 9216")
    NST = 9
    def dma_items(t):
        it = []
        slot = t % 4
        for qd in range(9):
            if qd % 4 == 0:
                grp = [f"s_add_u32 m0, s65, {slot*36864 + qd*1024}"]
                if qd == 0: grp.insert(0, f"s_add_u32 s66, s64, {t*64*1152}")
                it.append(grp)
            it.append(a.vmem(f"buffer_load_dwordx4 v{8+qd}, s[16:19], s66 offen offset:{(qd&3)*1024} lds", ("W", t)))
        return it
    def h_items(t):
        it = []
        for ks in range(2*t, 2*t+2):
            for s in range(4):
                if ks % 4 == 0 and ks: it.append(f"s_add_u32 s{52+s}, s{52+s}, 4096")
                it.append(a.vmem(f"buffer_load_dwordx4 {areg(ks*4+s)}, v7, s[24:27], s{52+s} offen offset:{(ks%4)*1024}", ("X", ks)))
        return it
    D = 2; DH = 3
    start = len(a.L)
    for t in range(DH):
        if t < D:
            for it in dma_items(t): a.emit(it)
        for it in h_items(t): a.emit(it)
    fix_m0(a, start)
    ACC = 64
    allf = []
    for t in range(NST):
        for n in range(18):
            ksl, b = n // 9, n % 9
            ks = 2*t + ksl
            allf.append(dict(t=t, n=n, g=len(allf), ks=ks, base=18 + t % 4, off=ksl*18432 + b*32,
                             mm=[(ACC + (s*9+b)*4, areg(ks*4+s), ks == 0) for s in range(4)]))
    NB, PF = 4, 3
    def reads(f):
        b = B0 + 4*(f["g"] % NB)
        return [a.lds(f"ds_read_b64_tr_b16 v[{b}:{b+1}], v{f['base']} offset:{f['off']}", ("F", f["g"])),
                a.lds(f"ds_read_b64_tr_b16 v[{b+2}:{b+3}], v{f['base']} offset:{f['off']+4608}", ("F", f["g"]))]
    a.emit(a.waitvm(("W", 0))); a("s_barrier")
    for g in range(PF):
        for x in reads(allf[g]): a.emit(x)
    a.emit(a.waitvm(("X", 0))); a.emit(a.waitlg(("F", 0)))
    for t in range(NST):
        fs = [f for f in allf if f["t"] == t]
        mf = []
        for f in fs:
            for acc, ar, first in f["mm"]:
                cc = "0" if first else f"v[{acc}:{acc+3}]"
                mf.append(f"v_mfma_f32_16x16x32_bf16 v[{acc}:{acc+3}], {breg(f['g'] % NB)}, {ar}, {cc}")
        G = Gaps(len(mf))
        for k, f in enumerate(fs):
            nx = f["g"] + PF
            if nx < len(allf):
                nf = allf[nx]; r = reads(nf)
                if nf["t"] != t and nf["n"] == 0:
                    G.put(4*k, [a.waitvm(("W", t+1)), "s_barrier"]); G.put(4*k+1, r[0]); G.put(4*k+2, r[1])
                else:
                    G.put(4*k, r[0]); G.put(4*k+1, r[1])
        if t + D < NST: G.put_free(dma_items(t+D), 0, len(mf)-2)
        if t + DH < NST: G.put_free(h_items(t+DH), 0, len(mf)-2)
        for k, f in enumerate(fs):
            nx = f["g"] + 1
            if nx < len(allf):
                w = [a.waitlg(("F", nx))]
                if allf[nx]["ks"] != f["ks"]: w.append(a.waitvm(("X", allf[nx]["ks"])))
                G.put(4*k+3, w)
        a.c(f"stage {t}")
        start = len(a.L)
        interleave(a, mf, G.g)
        fix_m0(a, start)
    a("s_barrier")
    a("s_mul_i32 s60, s14, 18432"); a("v_add_u32 v2, s60, v7")
    a("s_xor_b32 s60, s14, 1"); a("s_mul_i32 s60, s60, 18432"); a("v_add_u32 v3, s60, v7")
    a("s_nop 4")
    for idx in range(18):
        r = ACC + (18+idx)*4
        a(f"ds_write_b128 v2, v[{r}:{r+3}] offset:{idx*1024}")
    a("s_waitcnt lgkmcnt(0)"); a("s_barrier")
    for idx in range(18):
        r = ACC + (18+idx)*4
        a(f"ds_read_b128 v[{r}:{r+3}], v3 offset:{idx*1024}")
    a("s_lshl_b32 s60, s40, 2"); a("s_add_u32 s60, s60, s14"); a("s_lshl_b32 s60, s60, 2"); a("s_add_u32 s60, s60, s42")
    a("s_lshl_b32 s60, s60, 2"); a("s_add_u32 s60, s60, s41"); a("s_mul_i32 s60, s60, 9216")
    a("s_waitcnt lgkmcnt(0)")
    for b in range(9):
        T = 48 + 4*(b & 3)
        for s in range(2):
            r = ACC + (s*9+b)*4; o = ACC + (18+s*9+b)*4
            for k in range(4): a(f"v_add_f32 v{r+k}, v{r+k}, v{o+k}")
            a(f"v_cvt_pk_bf16_f32 v{T+2*s}, v{r}, v{r+1}"); a(f"v_cvt_pk_bf16_f32 v{T+2*s+1}, v{r+2}, v{r+3}")
        if b and b % 4 == 0: a("s_add_u32 s60, s60, 4096")
        a(f"buffer_store_dwordx4 v[{T}:{T+3}], v7, s[28:31], s60 offen offset:{(b&3)*1024} {ST}")
    a("G2_END:")
    a("s_endpgm")

def k3(a):
    head(a, "final_kernel")
    a("s_cmp_ge_u32 s2, 256"); a("s_cbranch_scc1 FIN_END")
    a("s_load_dwordx2 s[4:5], s[0:1], 0"); a("s_load_dwordx2 s[6:7], s[0:1], 80"); a("s_load_dwordx2 s[12:13], s[0:1], 96")
    wave_lane(a, 1, 14, 2)
    a("s_lshr_b32 s40, s2, 2"); a("s_and_b32 s42, s2, 3")
    a("v_and_b32 v2, 15, v1"); a("v_lshrrev_b32 v3, 4, v1")
    a("v_lshlrev_b32 v7, 4, v1")
    a("s_mul_i32 s43, s42, 144"); a("s_mul_i32 s44, s14, 48"); a("s_add_u32 s43, s43, s44")
    a("s_lshl_b32 s44, s40, 5"); a("v_add_u32 v4, s44, v2"); a("v_mul_u32_u24 v4, 1152, v4")
    a("v_lshl_add_u32 v4, v3, 3, v4"); a("s_lshl_b32 s45, s43, 1"); a("v_add_u32 v4, s45, v4")
    a("v_add_u32 v5, 18432, v4")
    a("v_lshrrev_b32 v6, 2, v1"); a("v_add_u32 v6, s43, v6"); a("v_lshlrev_b32 v6, 12, v6")
    a("v_and_b32 v8, 3, v1"); a("v_lshl_add_u32 v6, v8, 4, v6"); a("s_lshl_b32 s45, s40, 6"); a("v_add_u32 v6, s45, v6")
    a("v_lshrrev_b32 v9, 2, v1"); a("v_lshlrev_b32 v9, 6, v9"); a("v_lshl_add_u32 v9, v8, 3, v9")
    a("s_mul_i32 s46, s14, 3072"); a("v_add_u32 v9, s46, v9")
    a("s_waitcnt lgkmcnt(0)")
    srd(a, 16, 4, SZ_X); srd(a, 20, 6, SZ_X); srd(a, 24, 12, SZ_XN, WS_XN if WS_XN else None)
    srd(a, 28, 12, SZ_PART, WS_PART); srd(a, 32, 12, SZ_ZT, WS_ZT)
    for b in range(3):
        a(f"s_add_u32 m0, s46, {b*1024}"); a(f"s_mov_b32 s47, {b*16*4096}")
        a("buffer_load_dwordx4 v6, s[32:35], s47 offen lds")
    a("s_mul_i32 s48, s2, 36864"); a("s_add_u32 s48, s48, s46")
    for q in range(4):
        for b in range(3):
            r = 32 + (b*4+q)*4
            a(f"buffer_load_dwordx4 v[{r}:{r+3}], v7, s[28:31], s48 offen offset:{b*1024}")
        a("s_add_u32 s48, s48, 9216")
    for b in range(3):
        for s in range(2):
            r = 80 + (b*2+s)*2
            a(f"buffer_load_dwordx2 v[{r}:{r+1}], v{4+s}, s[16:19], 0 offen offset:{32*b}")
    for b in range(3):
        a(f"s_add_u32 s47, s43, {16*b}"); a("v_lshl_add_u32 v10, v3, 2, s47")
        a("v_lshrrev_b32 v11, 3, v10"); a("v_lshlrev_b32 v11, 8, v11")
        a("v_and_b32 v10, 7, v10"); a("v_lshl_add_u32 v11, v10, 1, v11"); a(f"v_lshl_add_u32 v{12+b}, v2, 4, v11")
    a("s_mul_i32 s49, s40, 36864")
    for b in range(3):
        for s in range(2):
            r = 92 + (b*2+s)*2
            a(f"s_add_u32 s47, s49, {s*18432}")
            a(f"buffer_load_dwordx2 v[{r}:{r+1}], v{12+b}, s[24:27], s47 offen")
    a("s_waitcnt vmcnt(24)")
    for b in range(3):
        for s in range(2):
            r = 104 + (b*2+s)*2
            a(f"ds_read_b64_tr_b16 v[{r}:{r+1}], v9 offset:{b*1024+32*s}")
    a("s_mov_b32 s50, 0xbfb8aa3b")
    a("s_waitcnt vmcnt(0) lgkmcnt(0)")
    def unp(dst, src, half):
        return f"v_and_b32 v{dst}, 0xffff0000, v{src}" if half else f"v_lshlrev_b32 v{dst}, 16, v{src}"
    for b in range(3):
        for s in range(2):
            O, T, X = 16, 20, 24
            for k in range(4):
                a(unp(O+k, 32+(b*4+0)*4 + 2*s + (k >> 1), k & 1))
            for q in range(1, 4):
                for k in range(4): a(unp(T+k, 32+(b*4+q)*4 + 2*s + (k >> 1), k & 1))
                for k in range(4): a(f"v_add_f32 v{O+k}, v{O+k}, v{T+k}")
            for k in range(4): a(f"v_mul_f32 v{T+k}, s50, v{O+k}")
            for k in range(4): a(f"v_exp_f32 v{T+k}, v{T+k}")
            for k in range(4): a(unp(X+k, 92+(b*2+s)*2 + (k >> 1), k & 1))
            for k in range(4): a(f"v_add_f32 v{T+k}, 1.0, v{T+k}")
            for k in range(4): a(f"v_rcp_f32 v{T+k}, v{T+k}")
            for k in range(4): a(f"v_mul_f32 v{O+k}, v{O+k}, v{X+k}")
            for k in range(4): a(unp(X+k, 104+(b*2+s)*2 + (k >> 1), k & 1))
            for k in range(4): a(f"v_mul_f32 v{O+k}, v{O+k}, v{T+k}")
            for k in range(4): a(unp(T+k, 80+(b*2+s)*2 + (k >> 1), k & 1))
            for k in range(4): a(f"v_fmac_f32 v{T+k}, v{O+k}, v{X+k}")
            r = 116 + (b*2+s)*2
            a(f"v_cvt_pk_bf16_f32 v{r}, v{T}, v{T+1}"); a(f"v_cvt_pk_bf16_f32 v{r+1}, v{T+2}, v{T+3}")
            a(f"buffer_store_dwordx2 v[{r}:{r+1}], v{4+s}, s[20:23], 0 offen offset:{32*b}")
    a("FIN_END:")
    a("s_endpgm")

def build():
    a = Asm()
    a("; @launch kernel=prep_kernel grid=(272,1,1) block=(256,1,1) lds=2048")
    a("; @launch kernel=gemm1_kernel grid=(256,1,1) block=(256,1,1) lds=147456")
    a("; @launch kernel=gemm2_kernel grid=(256,1,1) block=(256,1,1) lds=147456")
    a("; @launch kernel=final_kernel grid=(256,1,1) block=(192,1,1) lds=9216")
    a('.amdgcn_target "amdgcn-amd-amdhsa--gfx950"')
    k0(a); k1(a); k2(a); k3(a)
    return a.text() + kdesc("prep_kernel", 128, 128) + kdesc("gemm1_kernel", 512, 256) + kdesc("gemm2_kernel", 512, 256) + kdesc("final_kernel", 128, 128)

if __name__ == "__main__":
    out = sys.argv[1] if len(sys.argv) > 1 else "v1.s"
    open(out, "w").write(build())
```

```python
import sys
from asmlib import *

KN = "recurrent_scan__ssm_conv_h3__glu_gated_bilinear__prompt_kernel"
WS_UR, WS_ZT, WS_H, WS_PART, WS_FLAG, WS_STAMP = 0x400000, 0x800000, 0x1000000, 0x3000000, 0x3C00000, 0x4000000
WS_SZ = 0x3E00000
F2, F3, F4, F5 = WS_FLAG, WS_FLAG + 0x10000, WS_FLAG + 0x20000, WS_FLAG + 0x30000
SZ_X, SZ_W = 2359296, 5308416
OOB = 0x7ff00000
HC = 4160
L_HB = [73728 + s_*16704 for s_ in range(4)]
L_UR = 140544
L_X = 73728
PFL = 8
L_ZT = 147456
L_STATS, L_CS, L_DUMMY = 159744, 160768, 161792
P_Q, P_K, P_V, P_SH, P_SSM, P_D, P_WG, P_WU, P_WD, P_OUT, P_DBG, P_WS = 68, 70, 72, 74, 76, 78, 82, 84, 86, 88, 90, 92
NONCE = 94
S_G, S_U, S_X, S_T, S_WS, S_T2 = 16, 20, 24, 28, 32, 36
WSR = f"s[{S_WS}:{S_WS+3}]"
SPIN = 1 << 15
KSTEP = 32*9216

class Cfg:
    stamp = False; fine = False; st = "sc1"; prefetch = True; opt = set(); stg = False
C = Cfg()

def stamp(a, n, force=False):
    if C.stamp and (not C.stg or n <= 4 or force or getattr(C, "inloop", False)):
        a("s_memrealtime s[96:97]"); a("s_memtime s[12:13]"); a("s_waitcnt lgkmcnt(0)"); a(f"v_writelane_b32 v0, s96, {n}"); a(f"v_writelane_b32 v0, s12, {32+n}")
def fstamp(a, n):
    if C.fine: stamp(a, n)

AV0 = 224
def areg(idx):
    if idx < 8: return f"v[{AV0+4*idx}:{AV0+4*idx+3}]"
    r = (idx-8)*4
    return f"a[{r}:{r+3}]"
B0, NB = 32, 6
def breg(buf): return f"v[{B0+4*buf}:{B0+4*buf+3}]"
def unp(dst, src, half):
    return f"v_and_b32 v{dst}, 0xffff0000, v{src}" if half else f"v_lshlrev_b32 v{dst}, 16, v{src}"
def fix_m0(a, start):
    out = a.L[:start]; body = a.L[start:]
    for n, ln in enumerate(body):
        out.append(ln)
        if " m0," in ln and n+1 < len(body) and body[n+1].rstrip().endswith("lds"): out.append("s_nop 0")
    a.L = out
def emit_all(a, items):
    st = len(a.L)
    for it in items: a.emit(it)
    fix_m0(a, st)

slow = []
def poll_check(vaddr, vdata, name, soff):
    slow.append((name, vaddr, vdata, soff))
    return [f"v_cmp_ne_u64 vcc, s[{NONCE}:{NONCE+1}], v[{vdata}:{vdata+1}]", "s_nop 1", "s_cmp_lg_u64 vcc, 0", f"s_cbranch_scc1 SLOW_{name}", f"BACK_{name}:"]
def emit_slow(a):
    for name, vaddr, vdata, soff in slow:
        a(f"SLOW_{name}:"); a("s_mov_b32 s98, 0")
        a(f"SLOWL_{name}:"); a("s_sleep 1")
        a(f"buffer_load_dwordx2 v[{vdata}:{vdata+1}], v{vaddr}, {WSR}, {soff} offen sc1"); a("s_waitcnt vmcnt(0)")
        a(f"v_cmp_ne_u64 vcc, s[{NONCE}:{NONCE+1}], v[{vdata}:{vdata+1}]")
        a("s_add_u32 s98, s98, 1"); a(f"s_cmp_gt_u32 s98, {SPIN}"); a(f"s_cbranch_scc1 BACK_{name}")
        a("s_cmp_lg_u64 vcc, 0"); a(f"s_cbranch_scc1 SLOWL_{name}"); a(f"s_branch BACK_{name}")

def run_stage(a, fs, allf, reads, t, label, bar_pre, bar_tags, pre=(), post=(), early=(), anyw=(), late=(), head=(), tail=(), xtag=None, htag=None, post_atomic=False, lo_pre=0, lo_late=0, early_frac=0.62, vmwait=None):
    mf = []; fstart = []
    for f in fs:
        fstart.append(len(mf))
        for acc, sa, sb, first in f["mm"]:
            cc = "0" if first else f"v[{acc}:{acc+3}]"
            mf.append(f"v_mfma_f32_16x16x32_bf16 v[{acc}:{acc+3}], {sa or breg(f['g'] % NB)}, {sb}, {cc}")
    nm = len(mf)
    G = Gaps(nm)
    barg = None
    for k in range(0, len(fs), 2):
        g0 = fstart[k]
        nx = fs[k]["g"] + 4
        if nx < len(allf):
            r = reads(allf[nx]) + reads(allf[nx+1])
            if allf[nx]["t"] != t and allf[nx]["n"] == 0:
                barg = g0; g0 += 1
            for z in range(4): G.put(g0+z, r[z])
    if head: G.put_free(list(head), 0, 14)
    if barg is not None:
        if pre: G.put_free(list(pre), lo_pre, barg-2)
        G.g[barg] = list(bar_pre) + [a.waitvm(bar_tags), "s_barrier"] + G.g[barg]; G.load[barg] += 2
        if post: G.put_free([list(post)] if post_atomic else list(post), barg+1, nm-1)
    if early: G.put_free(list(early), 0, int(nm*early_frac))
    if anyw: G.put_free(list(anyw), 0, nm-2)
    if late: G.put_free(list(late), lo_late, nm-1)
    for x in tail: G.put(nm-1, x)
    for k in range(1, len(fs), 2):
        nx = fs[k]["g"] + 1
        if nx < len(allf):
            tags = [("F", nx+1)]
            if xtag: tags += xtag(allf[nx+1])
            w = [a.waitlg(tags)]
            if vmwait:
                vt = vmwait(fs[k], allf[nx], allf[nx+1])
                if vt: w.append(a.waitvm(vt))
            G.put(fstart[k] + len(fs[k]["mm"]) - 1, w)
    a.c(label)
    st_ = len(a.L); interleave(a, mf, G.g); fix_m0(a, st_)

def kernel(a):
    head(a, KN)
    a("s_cmp_ge_u32 s2, 256"); a("s_cbranch_scc1 K_EXIT")
    a("s_load_dwordx16 s[68:83], s[0:1], 0"); a("s_load_dwordx8 s[84:91], s[0:1], 64"); a("s_load_dwordx2 s[92:93], s[0:1], 96")
    a(f"s_memrealtime s[{NONCE}:{NONCE+1}]")
    a("v_lshrrev_b32 v2, 6, v0"); a("v_and_b32 v1, 63, v0"); a("v_readfirstlane_b32 s14, v2")
    a("s_getpc_b64 s[4:5]")
    a("s_and_b32 s44, s2, 7"); a("s_lshr_b32 s45, s2, 3")
    a("s_and_b32 s41, s44, 3"); a("s_lshr_b32 s44, s44, 2"); a("s_lshl_b32 s44, s44, 3")
    a("s_lshr_b32 s48, s45, 2"); a("s_add_u32 s40, s48, s44")
    a("s_and_b32 s42, s45, 3"); a("s_lshl_b32 s43, s41, 2"); a("s_add_u32 s43, s43, s42")
    a("s_lshr_b32 s46, s14, 1"); a("s_and_b32 s47, s14, 1")
    a("v_lshlrev_b32 v7, 4, v1")
    a("v_and_b32 v192, 15, v1"); a("v_lshrrev_b32 v193, 4, v1")
    a("s_lshl_b32 s49, s40, 7"); a("s_lshl_b32 s58, s14, 5"); a("s_add_u32 s49, s49, s58")
    a("v_lshrrev_b32 v194, 3, v1")
    a("v_add_u32 v6, s49, v194"); a("v_mul_u32_u24 v6, 1152, v6"); a("v_and_b32 v196, 7, v1"); a("v_xor_b32 v196, v196, v194"); a("v_lshl_add_u32 v6, v196, 4, v6")
    a("v_bfe_u32 v195, v1, 4, 1"); a("s_lshl_b32 s58, s47, 1"); a("v_or_b32 v195, s58, v195")
    a("v_bfe_u32 v196, v1, 1, 2"); a("v_xor_b32 v195, v195, v196")
    a("s_lshl_b32 s58, s14, 3"); a("v_add_u32 v194, s58, v194"); a("v_mul_u32_u24 v194, 9216, v194")
    a("v_and_b32 v196, 1, v1"); a("v_lshl_add_u32 v194, v196, 4, v194")
    a("v_lshl_add_u32 v2, v195, 5, v194"); a(f"v_add_u32 v3, {KSTEP-2048}, v2")
    a("s_mul_i32 s64, s43, 576"); a("s_and_b32 s45, s43, 1")
    a("s_lshl_b32 s58, s45, 9"); a("s_sub_u32 s63, s64, s58"); a("s_add_u32 s63, s63, 512")
    a("s_lshl_b32 s58, s45, 6"); a("s_add_u32 s64, s64, s58")
    a("s_mul_i32 s65, s14, 6144"); a("s_lshl_b32 s60, s14, 12")
    a("s_waitcnt lgkmcnt(0)")
    if C.stamp: a(f"v_mov_b32 v0, 0"); a(f"v_writelane_b32 v0, s{NONCE}, 0")
    srd(a, S_X, P_Q, SZ_X); srd(a, S_G, P_WG, SZ_W)
    a(f"s_sub_u32 s{S_U}, s{P_WU}, 1024"); a(f"s_subb_u32 s{S_U+1}, s{P_WU+1}, 0"); a(f"s_mov_b32 s{S_U+2}, {SZ_W+1024}"); a(f"s_mov_b32 s{S_U+3}, 0x20000")

    NST = 27
    def info(t): return ("F", t//6, t % 6) if t < 24 else ("H", 4, t-24)
    def wslot(t): return t % 3 if t < 6 else t % 6
    def w_items(t):
        kind, c, sl = info(t)
        va = 2 if kind == "F" else 4
        so = sl*3*KSTEP + (c*128 if kind == "F" else 0)
        sb = 64 if kind == "F" else 63
        it = [[f"s_add_u32 s66, s{sb}, {so}", f"s_add_u32 m0, s65, {wslot(t)*24576}"]]
        for k in range(4):
            it.append(a.vmem(f"buffer_load_dwordx4 v{va + (k >> 1)}, s[{S_G+4*(k&1)}:{S_G+4*(k&1)+3}], s66 offen offset:{k*1024} lds", ("W", t)))
        it.append([f"s_add_u32 s66, s{sb}, {so + 2*KSTEP}", f"s_add_u32 m0, s65, {wslot(t)*24576 + 4096}"])
        for k in range(2):
            it.append(a.vmem(f"buffer_load_dwordx4 v{va}, s[{S_G+4*k}:{S_G+4*k+3}], s66 offen offset:{k*1024} lds", ("W", t)))
        return it
    def x_items(u):
        it = []
        for r in range(4):
            grp = [f"s_mov_b32 s67, {u*128 + r*8192}"]
            if r == 0: grp.append(f"s_add_u32 m0, s60, {L_X + (u % 5)*16384}")
            it.append(grp)
            it.append(a.vmem(f"buffer_load_dwordx4 v6, s[{S_X}:{S_X+3}], s67 offen offset:{r*1024} lds", ("X", u)))
        return it
    fstamp(a, 20)
    emit_all(a, x_items(0) + w_items(0) + x_items(1))
    fstamp(a, 21)
    srd(a, S_WS, P_WS, WS_SZ)
    srd(a, S_T, P_DBG, 256)
    a(f"s_or_b32 s{NONCE}, s{NONCE}, 1")
    a("s_or_b32 s58, s2, s14"); a("s_cmp_eq_u32 s58, 0"); a(f"s_cselect_b32 s58, 0, {OOB}")
    a(f"v_mov_b32 v216, s{NONCE}"); a(f"v_mov_b32 v217, s{NONCE+1}"); a("v_mov_b32 v218, 0")
    a.emit(a.vmem(f"buffer_store_dwordx2 v[216:217], v218, s[{S_T}:{S_T+3}], s58 offen sc1", "NS"))
    a("v_and_b32 v196, 1, v195"); a("v_lshl_add_u32 v4, v196, 5, v194")
    a("v_lshrrev_b32 v195, 1, v195"); a(f"v_mul_u32_u24 v195, {288*9216}, v195"); a("v_add_u32 v4, v4, v195"); a(f"v_add_u32 v5, {KSTEP-2048}, v4")
    fstamp(a, 22)
    emit_all(a, w_items(1) + x_items(2))
    fstamp(a, 23)
    a("s_cmp_eq_u32 s47, 0"); a(f"s_cselect_b32 s8, s{P_WG}, s{P_WU}"); a(f"s_cselect_b32 s9, s{P_WG+1}, s{P_WU+1}"); a(f"s_mov_b32 s10, {SZ_W}"); a("s_mov_b32 s11, 0x20000")
    a("s_mul_i32 s58, s48, 12"); a("s_mul_i32 s59, s46, 6"); a("s_add_u32 s49, s58, s59")
    a(f"v_mov_b32 v201, {OOB}")
    a("v_add_u32 v212, s49, v1"); a("v_mul_u32_u24 v212, 9216, v212"); a("v_cmp_gt_u32 vcc, 6, v1"); a("s_nop 1"); a("v_cndmask_b32 v212, v201, v212, vcc")
    a("v_mul_u32_u24 v199, 43, v1"); a("v_lshrrev_b32 v199, 8, v199")
    a("v_mul_u32_u24 v200, 90, v199"); a("v_add_u32 v200, v200, v1")
    a("v_add_u32 v200, 192, v200"); a("v_add_u32 v200, s49, v200"); a("v_mul_u32_u24 v58, 9216, v200")
    a("v_cmp_lt_u32 vcc, 23, v1"); a(f"v_add_u32 v200, {128 - 576*9216 + (1 << 32)}, v58"); a("s_nop 0"); a("v_cndmask_b32 v58, v58, v200, vcc")
    a("v_cmp_gt_u32 vcc, 36, v1"); a("s_nop 1"); a("v_cndmask_b32 v58, v201, v58, vcc")
    a("v_lshrrev_b32 v199, 2, v1"); a("v_and_b32 v200, 3, v1"); a("v_lshlrev_b32 v200, 7, v200")
    a("s_lshl_b32 s58, s40, 7"); a("s_lshl_b32 s59, s42, 5"); a("s_add_u32 s58, s58, s59"); a("s_lshl_b32 s59, s14, 3"); a("s_add_u32 s58, s58, s59")
    a("v_add_u32 v199, s58, v199"); a("v_mul_u32_u24 v199, 1152, v199"); a("v_add_u32 v59, v199, v200")
    a("v_cmp_gt_u32 vcc, 32, v1"); a("s_nop 1"); a("v_cndmask_b32 v59, v201, v59, vcc")
    a("s_and_b32 s4, s4, 0xffffff00"); a("s_mov_b32 s6, K_EXIT+4-%s" % KN); a("s_mov_b32 s7, 0x20000")
    a("s_lshr_b32 s58, s2, 3"); a("s_lshl_b32 s58, s58, 2"); a("s_add_u32 s58, s58, s14"); a("s_lshl_b32 s58, s58, 9")
    a("v_lshlrev_b32 v60, 7, v1"); a("v_add_u32 v60, s58, v60"); a("v_cmp_gt_u32 vcc, 4, v1"); a("s_nop 1"); a("v_cndmask_b32 v60, v201, v60, vcc")
    if C.prefetch: a.emit(a.vmem("buffer_load_dword v213, v60, s[4:7], 0 offen", "PF"))
    pf0 = [a.vmem(f"buffer_load_dword v213, v59, s[{S_X}:{S_X+3}], 0 offen offset:640", "PF"), a.vmem("buffer_load_dword v213, v58, s[8:11], s64 offen", "PF")]
    def pf_roll(t):
        tau = t + PFL
        if tau >= NST or not C.prefetch: return []
        kind, c, sl = info(tau)
        it = []
        if tau == 24:
            it += ["v_add_u32 v212, s49, v1", "v_add_u32 v219, 282, v212", "v_cmp_lt_u32 vcc, 5, v1", "s_nop 1", "v_cndmask_b32 v212, v212, v219, vcc", "v_mul_u32_u24 v212, 9216, v212",
                   "v_cmp_gt_u32 vcc, 12, v1", f"v_mov_b32 v219, {OOB}", "s_nop 0", "v_cndmask_b32 v212, v219, v212, vcc"]
        it += [f"s_add_u32 s59, s{64 if kind == 'F' else 63}, {sl*3*KSTEP + (c*128 if kind == 'F' else 0)}", a.vmem("buffer_load_dword v213, v212, s[8:11], s59 offen", "PF")]
        return it
    def pf_misc(t):
        if not C.prefetch: return []
        if t == 10:
            return [f"s_mov_b32 s4, s{P_SSM}", f"s_mov_b32 s5, s{P_SSM+1}", f"s_mov_b32 s6, {SZ_X}", "s_lshl_b32 s58, s2, 2", "s_add_u32 s58, s58, s14", "s_lshl_b32 s60, s58, 12",
                    "v_lshlrev_b32 v215, 7, v1", "v_cmp_gt_u32 vcc, 16, v1", f"v_mov_b32 v219, {OOB}", "s_nop 0", "v_cndmask_b32 v215, v219, v215, vcc",
                    a.vmem("buffer_load_dword v213, v215, s[4:7], s60 offen", "PF")]
        if t == 11: return [a.vmem("buffer_load_dword v213, v215, s[4:7], s60 offen offset:2048", "PF")]
        if t == 12:
            return [f"s_mov_b32 s4, s{P_WD}", f"s_mov_b32 s5, s{P_WD+1}", f"s_mov_b32 s6, {SZ_W}",
                    "s_lshl_b32 s58, s48, 2", "s_add_u32 s58, s58, s42", "s_lshl_b32 s58, s58, 2", "s_add_u32 s58, s58, s14", "s_mul_i32 s58, s58, 10368",
                    "s_mul_i32 s60, s41, 1327104", "s_add_u32 s60, s58, s60", "v_cmp_gt_u32 vcc, 9, v1", f"v_mov_b32 v219, {OOB}", "s_nop 0", "v_cndmask_b32 v215, v219, v215, vcc",
                    a.vmem("buffer_load_dword v213, v215, s[4:7], s60 offen", "PF")]
        if 13 <= t <= 20: return ["s_add_u32 s60, s60, 1152", a.vmem("buffer_load_dword v213, v215, s[4:7], s60 offen", "PF")]
        return []
    a.emit(a.vmem(f"buffer_load_dwordx2 v[216:217], v218, s[{S_T}:{S_T+3}], 0 offen sc1", "NL"))
    a("v_bfe_u32 v196, v1, 2, 2")
    a("v_mul_u32_u24 v200, 6144, v193"); a("v_lshl_add_u32 v200, v196, 7, v200")
    a("v_and_b32 v195, 1, v193"); a("v_lshlrev_b32 v195, 1, v195"); a("v_lshrrev_b32 v196, 1, v196"); a("v_or_b32 v195, v195, v196")
    a("v_lshl_add_u32 v200, v195, 5, v200"); a("v_and_b32 v195, 3, v1"); a("v_lshl_add_u32 v200, v195, 3, v200")
    a("s_lshl_b32 s58, s47, 6"); a("s_lshl_b32 s59, s46, 5"); a("s_or_b32 s58, s58, s59")
    a("v_xor_b32 v8, s58, v200"); a("v_xor_b32 v9, 32, v8")
    for rg in (1, 2):
        a(f"v_add_u32 v{8+2*rg}, {rg*49152}, v8"); a(f"v_add_u32 v{9+2*rg}, {rg*49152}, v9")
    a("s_lshl_b32 s58, s47, 5"); a("v_xor_b32 v220, s58, v200"); a("v_xor_b32 v221, 64, v220")
    a("v_add_u32 v222, 49152, v220"); a("v_add_u32 v223, 49152, v221")
    a("s_lshl_b32 s58, s46, 2"); a("s_lshl_b32 s59, s47, 1"); a("s_add_u32 s67, s58, s59"); a("s_lshl_b32 s66, s67, 11"); a(f"s_add_u32 s66, s66, {L_X}")
    a("v_and_b32 v195, 7, v192"); a("v_xor_b32 v195, v195, v193"); a("v_lshlrev_b32 v195, 4, v195"); a("v_lshl_add_u32 v195, v192, 7, v195")
    a("v_add_u32 v14, s66, v195"); a("v_xor_b32 v15, 4096, v14"); a("v_xor_b32 v56, 64, v14"); a("v_xor_b32 v57, 64, v15")
    a("v_lshrrev_b32 v195, 2, v192"); a("v_cmp_eq_u32 vcc, v195, v193")
    a("s_lshl_b32 s66, s67, 7"); a(f"s_add_u32 s66, s66, {L_STATS}"); a("v_lshl_add_u32 v211, v192, 3, s66")
    a(f"v_mov_b32 v196, {L_DUMMY}"); a("v_cndmask_b32 v208, v196, v211, vcc")
    a("s_lshl_b32 s58, s47, 8"); a("s_lshl_b32 s59, s46, 7"); a("s_add_u32 s58, s58, s59"); a(f"s_add_u32 s58, s58, {L_CS}")
    a("v_lshl_add_u32 v210, v193, 4, s58")
    a("v_cmp_eq_u32 vcc, 0, v192"); a("v_and_b32 v195, 3, v192"); a("s_nop 0"); a("v_cndmask_b32 v209, v196, v210, vcc")
    for k in (1, 2, 3): a(f"v_cmp_eq_u32 s[{48+2*k}:{49+2*k}], {k}, v195")
    for k in range(4): a(f"v_mov_b32 v{24+k}, 0x3f803f80")
    HS = [100, 101, 3, 15]
    a("s_lshl_b32 s58, s40, 3"); a("s_lshl_b32 s59, s46, 2"); a("s_add_u32 s58, s58, s59")
    a("s_lshl_b32 s59, s47, 1")
    a("s_mul_i32 s66, s43, 9"); a("s_add_u32 s66, s66, s47"); a("s_add_u32 s66, s66, s45"); a("s_lshl_b32 s66, s66, 10"); a(f"s_add_u32 s66, s66, {WS_H}")
    for s in range(4):
        a(f"s_xor_b32 s67, s59, {s}"); a("s_add_u32 s67, s67, s58"); a(f"s_mul_i32 s{HS[s]}, s67, 147456"); a(f"s_add_u32 s{HS[s]}, s{HS[s]}, s66")
    a("s_lshl_b32 s99, s47, 10"); a("s_mul_i32 s58, s45, 9216"); a("s_add_u32 s99, s99, s58")
    a("s_lshl_b32 s56, s40, 2"); a("s_add_u32 s56, s56, s41"); a("s_lshl_b32 s56, s56, 7"); a(f"s_add_u32 s56, s56, {F3}")
    a("s_lshl_b32 s58, s42, 2"); a("s_add_u32 s58, s58, s14"); a("s_lshl_b32 s58, s58, 3"); a("s_add_u32 s57, s56, s58")
    a(f"v_mov_b32 v214, {OOB}"); a(f"s_mov_b32 s61, {OOB}")
    a("s_cmp_lt_u32 s2, 144"); a(f"s_cselect_b32 s62, 0, {OOB}")
    stamp(a, 1)
    KR, VR, WR, KO = 64, 100, 124, 160
    a("s_cmp_lt_u32 s2, 144"); a("s_cbranch_scc1 KV_DONE")
    a("s_cmp_ge_u32 s2, 243"); a("s_cbranch_scc1 KV_DONE")
    a("s_sub_u32 s58, s2, 144"); a("s_mul_i32 s59, s58, 7282"); a("s_lshr_b32 s59, s59, 16")
    a("s_mul_i32 s66, s59, 9"); a("s_sub_u32 s58, s58, s66")
    a("s_lshl_b32 s61, s58, 7"); a("s_lshl_b32 s66, s59, 3"); a("s_add_u32 s61, s61, s66"); a(f"s_add_u32 s61, s61, {F2}")
    a("s_cmp_eq_u32 s14, 0"); a(f"s_cselect_b32 s61, s61, {OOB}")
    a("s_lshl_b32 s59, s59, 2"); a("s_add_u32 s59, s59, s14"); a("s_mul_i32 s59, s59, 48"); a("s_min_u32 s59, s59, 2000")
    a("v_lshrrev_b32 v194, 3, v1"); a("v_mul_u32_u24 v194, 6, v194"); a("v_add_u32 v194, s59, v194")
    a("v_and_b32 v195, 7, v1"); a("s_lshl_b32 s58, s58, 3"); a("v_add_u32 v195, s58, v195")
    a("v_mul_u32_u24 v196, 1152, v194"); a("v_lshl_add_u32 v196, v195, 4, v196")
    a("v_subrev_u32 v197, 3456, v196"); a("v_add_u32 v198, 3456, v196")
    srd(a, S_T, P_K, SZ_X); srd(a, S_T2, P_V, SZ_X)
    for r in range(9): a(f"buffer_load_dwordx4 v[{KR+4*r}:{KR+4*r+3}], v{(197,196,198)[r//3]}, s[{S_T}:{S_T+3}], 0 offen offset:{1152*(r%3)}")
    for r in range(6): a(f"buffer_load_dwordx4 v[{VR+4*r}:{VR+4*r+3}], v{(196,198)[r//3]}, s[{S_T2}:{S_T2+3}], 0 offen offset:{1152*(r%3)}")
    srd(a, S_T, P_SH, 4608)
    a("v_lshlrev_b32 v198, 6, v195")
    for r in range(4): a(f"buffer_load_dwordx4 v[{WR+4*r}:{WR+4*r+3}], v198, s[{S_T}:{S_T+3}], 0 offen offset:{16*r}")
    a("v_lshlrev_b32 v214, 15, v195"); a("v_lshlrev_b32 v198, 1, v194"); a("v_sub_u32 v214, v214, v198"); a("v_add_u32 v214, 4084, v214")
    a("s_waitcnt vmcnt(0)")
    for e in range(8):
        d, hf = e >> 1, e & 1
        o = 140
        for r in range(9): a(unp(o+r, KR+4*r+d, hf))
        a(unp(o+9, WR+2*e, 0)); a(unp(o+10, WR+2*e, 1)); a(unp(o+11, WR+1+2*e, 0)); a(unp(o+12, WR+1+2*e, 1))
        for r in range(6): a(f"v_mul_f32 v{o+13+r}, v{o+r}, v{o+12}")
        for tap in (1, 2, 3):
            for r in range(6): a(f"v_fmac_f32 v{o+13+r}, v{o+r+tap}, v{o+12-tap}")
        for r in range(6): a(unp(o+r, VR+4*r+d, hf))
        for r in range(6): a(f"v_mul_f32 v{o+13+r}, v{o+13+r}, v{o+r}")
        for k in range(3): a(f"v_cvt_pk_bf16_f32 v{KO+4*e+k}, v{o+18-2*k}, v{o+17-2*k}")
    a("KV_DONE:")
    def kv_stores():
        it = []
        for e in range(8):
            it.append(f"s_mov_b32 s67, {WS_UR + e*4096}")
            it.append(a.vmem(f"buffer_store_dwordx3 v[{KO+4*e}:{KO+4*e+2}], v214, {WSR}, s67 offen {C.st}", "KS"))
        return it
    stamp(a, 2)

    ACC = 64
    SA, SQ, CSA, ONES, MU, CV = 192, 200, 16, 24, 28, 192
    ones = f"v[{ONES}:{ONES+3}]"
    allf = []
    for t in range(NST):
        kind, c, sl = info(t)
        slot = wslot(t)
        st = (c & 1)*64
        for n in range(12):
            ksl, b, mat = n >> 2, (n >> 1) & 1, n & 1
            off = (slot % 2)*24576 + (2*ksl+mat)*1024
            if kind == "F":
                ks = sl*3 + ksl
                mm = [(ACC + st + ((mat*2+b)*4 + s)*4, None, areg(ks*4+s), ks == 0) for s in range(4)]
                if b == 0: mm.append((CSA+4*mat, None, ones, ks == 0))
                if c == 0 and b == 1:
                    mm.append((SA+4*mat, ones, areg(ks*4+mat), ks == 0))
                    mm.append((SQ+4*mat, areg(ks*4+mat), areg(ks*4+mat), ks == 0))
                base = 8 + 2*(slot//2) + b
            else:
                ks = sl*3 + ksl + 9*b
                first = sl == 0 and ksl == 0 and b == 0
                mm = [(ACC + (mat*4 + s)*4, None, areg(ks*4+s), first) for s in range(4)]
                mm.append((CSA+4*mat, None, ones, first))
                base = 220 + 2*(slot//2) + b
            allf.append(dict(t=t, n=n, g=len(allf), ks=ks, base=base, off=off, mm=mm))
    def reads(f):
        b = B0 + 4*(f["g"] % NB)
        return [a.lds(f"ds_read_b64_tr_b16 v[{b}:{b+1}], v{f['base']} offset:{f['off']}", ("F", f["g"])),
                a.lds(f"ds_read_b64_tr_b16 v[{b+2}:{b+3}], v{f['base']} offset:{f['off']+512}", ("F", f["g"]))]
    XU = {0: (0, 1), 1: (2,), 2: (3, 4), 3: (5,), 4: (6, 7), 5: (8,)}
    def xreads(t):
        it = []
        for u in XU[t]:
            big = u % 5 == 4
            if big: it += [f"v_add_u32 v{r}, 0x10000, v{r}" for r in (14, 15, 56, 57)]
            for kp in range(2):
                for s in range(4):
                    it.append(a.lds(f"ds_read_b128 {areg((2*u+kp)*4+s)}, v{((14, 15), (56, 57))[kp][s>>1]} offset:{(0 if big else (u%5)*16384) + (s&1)*2048}", ("XR", 2*u+kp)))
            if big: it += [f"v_subrev_u32 v{r}, 0x10000, v{r}" for r in (14, 15, 56, 57)]
        return it
    def cs_write(c):
        return [a.lds(f"ds_write_b128 v209, v[{CSA+4*m}:{CSA+4*m+3}] offset:{(c&1)*512 + m*64}", ("CSW", c)) for m in range(2)]
    def cs_read(c):
        return [a.lds(f"ds_read_b128 v[{CV+(be*2+m)*4}:{CV+(be*2+m)*4+3}], v{14+be} offset:{(c&1)*512 + m*64}", ("CSR", c)) for be in range(2) for m in range(2)]
    def stats_write():
        it = []
        for s in range(2):
            q, sa, T = SQ+4*s, SA+4*s, 56+4*s
            it += [f"v_cndmask_b32 v{T}, v{q}, v{q+1}, s[50:51]", f"v_cndmask_b32 v{T}, v{T}, v{q+2}, s[52:53]", f"v_cndmask_b32 v{T}, v{T}, v{q+3}, s[54:55]",
                   f"v_mul_f32 v{T+2}, 0x3ae38e39, v{sa}", f"v_mul_f32 v{T}, 0x3ae38e39, v{T}", f"v_fma_f32 v{T}, -v{T+2}, v{T+2}, v{T}",
                   f"v_max_f32 v{T}, 0, v{T}", f"v_add_f32 v{T}, 0x3727c5ac, v{T}", [f"v_rsq_f32 v{T+3}, v{T}", "s_nop 0"],
                   a.lds(f"ds_write_b64 v208, v[{T+2}:{T+3}] offset:{s*128}", "STW")]
        return it
    def stats_read():
        return ["v_xor_b32 v208, 256, v211"] + [a.lds(f"ds_read_b32 v{MU+s}, v{(211, 208)[s>>1]} offset:{(s&1)*128}", ("CSR", 0)) for s in range(4)]
    def epi_items(c):
        it = []
        st = (c & 1)*64
        for s in range(4):
            T = 56 + 4*(s & 1)
            if c < 4:
                for b in range(2):
                    g_ = ACC + st + (b*4 + s)*4; u_ = ACC + st + ((2+b)*4 + s)*4
                    cg, cu = CV + (b*2)*4, CV + (b*2+1)*4
                    for k in range(4): it.append(f"v_fma_f32 v{g_+k}, -v{MU+s}, v{cg+k}, v{g_+k}")
                    for k in range(4): it.append(f"v_fma_f32 v{u_+k}, -v{MU+s}, v{cu+k}, v{u_+k}")
                    for k in range(4): it.append(f"v_mul_f32 v{g_+k}, v{g_+k}, v{u_+k}")
                    it.append(f"v_cvt_pk_bf16_f32 v{T+2*b}, v{g_}, v{g_+1}")
                    it.append(f"v_cvt_pk_bf16_f32 v{T+2*b+1}, v{g_+2}, v{g_+3}")
                it.append(a.vmem(f"buffer_store_dwordx4 v[{T}:{T+3}], v7, {WSR}, s{HS[s]} offen offset:{(c&1)*2048} {C.st}", ("HS", c)))
                if c & 1: it.append(f"s_add_u32 s{HS[s]}, s{HS[s]}, 4096")
            else:
                g_ = ACC + s*4; u_ = ACC + (4+s)*4
                for k in range(4): it.append(f"v_fma_f32 v{g_+k}, -v{MU+s}, v{CSA+k}, v{g_+k}")
                for k in range(4): it.append(f"v_fma_f32 v{u_+k}, -v{MU+s}, v{CSA+4+k}, v{u_+k}")
                for k in range(4): it.append(f"v_mul_f32 v{g_+k}, v{g_+k}, v{u_+k}")
                it.append(f"v_cvt_pk_bf16_f32 v{T}, v{g_}, v{g_+1}"); it.append(f"v_cvt_pk_bf16_f32 v{T+1}, v{g_+2}, v{g_+3}")
                it.append(f"s_sub_u32 s67, s{HS[s]}, s99")
                it.append(a.vmem(f"buffer_store_dwordx2 v[{T}:{T+1}], v215, {WSR}, s67 offen {C.st}", ("HS", c)))
        return it
    def conv_loads(part):
        def cp(s_):
            return [[f"s_add_u32 s67, s62, {2*s_}", f"s_add_u32 m0, s45, {L_HB[s_]+32}"]] + [a.vmem(f"buffer_load_dwordx4 v7, s[{S_T}:{S_T+3}], s67 offen offset:{1024*k} lds", "CV") for k in range(4)]
        if part == 0:
            return [f"s_lshl_b32 s58, s2, 2", "s_add_u32 s58, s58, s14", "s_lshl_b32 s49, s58, 12", "s_lshl_b32 s60, s58, 1",
                    "s_cmp_lt_u32 s2, 144", "s_cselect_b32 s49, s49, 0",
                    f"s_add_u32 s{S_T}, s{P_SSM}, s49", f"s_addc_u32 s{S_T+1}, s{P_SSM+1}, 0", f"s_mov_b32 s{S_T+2}, 4096", f"s_mov_b32 s{S_T+3}, 0x20000",
                    f"s_mul_i32 s45, s14, {HC}"] + cp(0)
        if part == 1: return cp(1)
        if part == 2: return cp(2) + cp(3)[:3]
        it = [[f"s_add_u32 s67, s62, 6", f"s_add_u32 m0, s45, {L_HB[3]+32}"]] + cp(3)[3:]
        it.append([f"s_add_u32 s67, s49, {WS_UR}", "s_add_u32 s67, s67, s62", "s_mul_i32 s58, s14, 4608", f"s_add_u32 m0, s58, {L_UR}"])
        for k in range(4): it.append(a.vmem(f"buffer_load_dwordx4 v7, {WSR}, s67 offen offset:{1024*k} sc1 lds", "CV"))
        it += ["v_and_b32 v210, 15, v1", "v_lshrrev_b32 v211, 4, v1", "v_add_u32 v210, v210, v211", "v_subrev_u32 v210, 16, v210", "v_lshlrev_b32 v210, 1, v210"]
        it.append(a.vmem(f"buffer_load_ushort v4, v210, s[{S_T}:{S_T+3}], 0 offen", "CV"))
        it += [f"s_mov_b32 s{S_T2}, s{P_D}", f"s_mov_b32 s{S_T2+1}, s{P_D+1}", f"s_mov_b32 s{S_T2+2}, 1152", f"s_mov_b32 s{S_T2+3}, 0x20000"]
        it.append(a.vmem(f"buffer_load_ushort v5, v218, s[{S_T2}:{S_T2+3}], s60 offen", "CV"))
        return it
    def flag_store(soff, tag): return a.vmem(f"buffer_store_dwordx2 v[216:217], v218, {WSR}, {soff} offen sc1", tag)
    def h_pf(k0, nk, vtmp):
        it = [f"v_bfe_u32 v219, v1, 3, 2", "s_and_b32 s59, s42, 1", f"s_add_u32 s59, s59, {k0}", "v_add_u32 v219, s59, v219"]
        if k0 + nk + 1 > 9: it += ["v_cmp_lt_u32 vcc, 8, v219", f"v_subrev_u32 v{vtmp}, 9, v219", "s_nop 0", f"v_cndmask_b32 v219, v219, v{vtmp}, vcc"]
        it += [f"v_lshrrev_b32 v{vtmp}, 5, v1", f"v_mul_u32_u24 v{vtmp}, 144, v{vtmp}", f"v_add_u32 v{vtmp}, v{vtmp}, v219", f"v_lshlrev_b32 v{vtmp}, 10, v{vtmp}",
               "v_and_b32 v219, 7, v1", f"v_lshl_add_u32 v{vtmp}, v219, 7, v{vtmp}"]
        if nk < 4: it += ["v_and_b32 v219, 31, v1", f"v_cmp_gt_u32 vcc, {8*nk}, v219", f"v_mov_b32 v219, {OOB}", "s_nop 0", f"v_cndmask_b32 v{vtmp}, v219, v{vtmp}, vcc"]
        it += ["s_lshl_b32 s58, s40, 3", "s_lshl_b32 s59, s14, 1", "s_add_u32 s58, s58, s59", "s_mul_i32 s58, s58, 144",
               "s_lshl_b32 s59, s41, 2", "s_add_u32 s59, s59, s42", "s_mul_i32 s59, s59, 9", "s_add_u32 s58, s58, s59", "s_lshl_b32 s58, s58, 10", f"s_add_u32 s58, s58, {WS_H}",
               a.vmem(f"buffer_load_dword v213, v{vtmp}, {WSR}, s58 offen sc1", "PF")]
        return it
    a.emit(a.waitvm(("X", 1))); a("s_barrier")
    for x in xreads(0): a.emit(x)
    for g in range(4):
        for x in reads(allf[g]): a.emit(x)
    a.emit(a.waitlg(("F", 1)))
    stamp(a, 4)
    for t in range(NST):
        kind, c, sl = info(t)
        if C.stg: stamp(a, 4+t, True)
        elif t in (6, 12, 18, 24): stamp(a, {6: 5, 12: 6, 18: 7, 24: 8}[t])
        fs = [f for f in allf if f["t"] == t]
        pre = []; post = []; anyw = []; early = []; hd = []; late = []; tail = []; atomic = False
        if t <= 6: early += w_items(t+2)
        if t == 0: early = x_items(3) + early[:4] + (pf0 if C.prefetch else []) + early[4:] + x_items(4)
        if t == 1: early = x_items(5) + early + x_items(6)
        if t in (2, 3): early = x_items(t+5) + early
        if t == 6: early += w_items(9)
        if t == 7: early += w_items(10) + w_items(11)
        if t >= 8 and t + 4 < NST: anyw += w_items(t+4)
        if t < 5: post += xreads(t+1)
        if t == 5: anyw += kv_stores()
        anyw = anyw[:3] + pf_roll(t) + anyw[3:6] + pf_misc(t) + anyw[6:]
        if t == 6: pre += ["v_mov_b32 v14, v210", "v_xor_b32 v15, 128, v210"] + stats_write()
        if sl == 1 and c >= 1:
            hd = cs_read(c-1) + (stats_read() if c == 1 else []) + [a.waitlg(("CSR", c-1))]
        if c >= 1:
            e = epi_items(c-1)
            cuts = {1: (0, 0.14), 2: (0.14, 0.36), 3: (0.36, 0.58), 4: (0.58, 0.8), 5: (0.8, 1.0)} if kind == "F" else {1: (0, 0.42), 2: (0.42, 1.0)}
            if sl in cuts: late = e[int(len(e)*cuts[sl][0]+0.5): int(len(e)*cuts[sl][1]+0.5)]
            if "noepi" in C.opt: late = [x for x in late if not isinstance(x, str)]
            if "nohs" in C.opt: late = [x if isinstance(x, str) else a.vmem("s_nop 0", x[2]) for x in late]
        tags = [("W", t+1)] + ([("X", u) for u in XU[t+1]] if t+1 < 6 else [])
        if t == 7:
            tags.append("NL"); atomic = True
            post += ["v_readfirstlane_b32 s94, v216", "v_readfirstlane_b32 s95, v217", "s_nop 3", "s_cmp_eq_u32 s94, 0", "s_cbranch_scc1 SLOW_NONCE", "BACK_NONCE:"]
        if t == 9:
            tags.append("KS"); post += [flag_store("s61", "FS")]
        if t == 20:
            tags.append(("HS", 1)); post += [flag_store("s57", "FS")]
        if t == 21:
            early = ["s_lshr_b32 s58, s2, 4", "s_lshl_b32 s58, s58, 7", f"s_add_u32 s44, s58, {F2}", "v_min_u32 v212, 10, v1", "v_lshlrev_b32 v212, 3, v212",
                     a.vmem(f"buffer_load_dwordx2 v[210:211], v212, {WSR}, s44 offen sc1", "P2L")] + early
            anyw += ["s_xor_b32 s59, s46, s47", "s_lshl_b32 s59, s59, 3", "v_add_u32 v215, s59, v7"]
        if t == 24:
            early = ["v_and_b32 v214, 15, v1", "v_lshlrev_b32 v214, 3, v214", a.vmem(f"buffer_load_dwordx2 v[2:3], v214, {WSR}, s56 offen sc1", "P3AL")] + early
            tags.append("P2L"); atomic = True
            post += ["s_cmp_ge_u32 s2, 144", "s_cbranch_scc1 BACK_F2"] + poll_check(212, 210, "F2", "s44")
        if t == 25:
            tags.append("P3AL"); tags.append(("HS", 2))
            post += [poll_check(214, 2, "F3A", "s56"), f"s_add_u32 s67, s57, 0x4000", flag_store("s67", "FS")] + (h_pf(0, 4, 212) if C.prefetch else [])
        if t >= 23: early += conv_loads(t-23)
        bar_pre = []
        if t <= 5: bar_pre.append(a.waitlg([("F", fs[-1]["g"])] + [("XR", k) for k in range(2*XU[t][-1]+2)]))
        if sl == 0 and c >= 1: bar_pre.append(a.waitlg([("CSW", c-1), "STW"] if c == 1 else ("CSW", c-1)))
        if kind == "F" and sl == 5: tail = cs_write(c)
        run_stage(a, fs, allf, reads, t, f"P1 stage {t}", bar_pre, tags, pre=pre, post=post, early=early, anyw=anyw, late=late, head=hd, tail=tail,
                  xtag=lambda f: [("XR", f["ks"])] if f["t"] < 6 else [], post_atomic=atomic, lo_pre=8, lo_late=16 if sl == 1 else 0,
                  early_frac=0.6 if t in (24, 25) else 0.95)
    stamp(a, 31, True) if C.stg else stamp(a, 9)
    DV = list(range(10, 19))
    a("s_barrier")
    a("v_mul_u32_u24 v2, 3641, v1"); a("v_lshrrev_b32 v2, 16, v2"); a("v_mul_u32_u24 v3, 18, v2"); a("v_sub_u32 v3, v1, v3")
    a("v_mul_u32_u24 v2, 1152, v2")
    for it in epi_items(4): a.emit(it)
    a("v_lshl_add_u32 v10, v3, 4, v2")
    for qd in range(1, 9):
        d = 3*1152 + 160 - (1024 if qd & 3 else -3072)
        a("v_add_u32 v3, 10, v3"); a("v_cmp_lt_u32 vcc, 17, v3"); a(f"v_add_u32 v{10+qd}, {d}, v{9+qd}"); a(f"v_add_u32 v2, {1152-288}, v{10+qd}")
        a(f"v_cndmask_b32 v{10+qd}, v{10+qd}, v2, vcc"); a("v_subrev_u32 v2, 18, v3"); a("v_cndmask_b32 v3, v3, v2, vcc")
    srd(a, S_G, P_WD, SZ_W)
    a("s_mul_i32 s64, s41, 1152"); a("s_mul_i32 s60, s47, 576"); a("s_add_u32 s64, s64, s60"); a("s_mul_i32 s64, s64, 1152")
    a("s_mul_i32 s60, s42, 288"); a("s_add_u32 s64, s64, s60")
    a("s_mul_i32 s65, s14, 9216")
    a(f"s_mul_i32 s63, s46, {32*1152}")
    KORD = [0, 1, 2, 3, 10, 11, 12, 13, 4, 5, 14, 15, 6, 7, 16, 17, 8, 9]
    def d_items(t):
        it = []
        for qd in range(9):
            if qd % 4 == 0:
                grp = [f"s_add_u32 m0, s65, {(t % 4)*36864 + qd*1024}"]
                if qd == 0: grp = [f"s_add_u32 s66, s64, {KORD[2*t]*32*1152}", "s_add_u32 s66, s66, s63"] + grp
                it.append(grp)
            it.append(a.vmem(f"buffer_load_dwordx4 v{DV[qd]}, s[{S_G}:{S_G+3}], s66 offen offset:{(qd&3)*1024} lds", ("D", t)))
        return it
    a("s_lshl_b32 s58, s40, 3"); a("s_lshl_b32 s59, s46, 2"); a("s_add_u32 s58, s58, s59"); a("s_lshl_b32 s59, s47, 1")
    a("s_mul_i32 s66, s41, 36"); a("s_mul_i32 s67, s47, 18"); a("s_add_u32 s66, s66, s67"); a("s_lshl_b32 s66, s66, 10"); a(f"s_add_u32 s66, s66, {WS_H}")
    for s in range(4):
        a(f"s_xor_b32 s67, s59, {s}"); a("s_add_u32 s67, s67, s58"); a(f"s_mul_i32 s{52+s}, s67, 147456"); a(f"s_add_u32 s{52+s}, s{52+s}, s66")
    a("v_mov_b32 v26, v216"); a("v_mov_b32 v27, v217"); a("v_mov_b32 v25, 0"); a("v_mov_b32 v19, v214")
    def fl(soff, tag): return a.vmem(f"buffer_store_dwordx2 v[26:27], v25, {WSR}, {soff} offen sc1", tag)
    def h_items(p0, p1):
        it = []
        for p in range(p0, p1):
            ks = KORD[p]
            for s in range(4):
                it.append(a.vmem(f"buffer_load_dwordx4 {areg(p*4+s)}, v{(7, 28, 29, 30, 31)[ks >> 2]}, {WSR}, s{52+s} offen offset:{(ks&3)*1024} sc1", ("H", p)))
        return it
    for j in range(1, 5): a(f"v_add_u32 v{27+j}, {4096*j}, v7")
    def sigC(): return [a.waitvm(("HS", 4)), "s_add_u32 s67, s57, 0x8000", fl("s67", "FS3")]
    stamp(a, 10)
    a("s_cmp_ge_u32 s2, 144"); a("s_cbranch_scc1 NOCONV")
    vm_save = list(a.vm)
    a("v_and_b32 v2, 15, v1"); a("v_lshrrev_b32 v3, 4, v1")
    a(f"s_add_u32 s45, s45, {L_HB[0]}"); a("s_mul_i32 s58, s14, 4608"); a(f"s_add_u32 s58, s58, {L_UR}")
    a(f"v_mul_u32_u24 v208, 16704, v3"); a("v_lshl_add_u32 v208, v2, 1, v208"); a("v_add_u32 v208, s45, v208")
    a("v_mov_b32 v8, 0"); a("v_mov_b32 v9, 0"); a("v_lshlrev_b32 v209, 3, v1"); a("v_add_u32 v209, s58, v209")
    a(f"ds_write_b64 v209, v[8:9] offset:4096")
    a("v_lshl_add_u32 v211, v3, 3, v2"); a("v_add_u32 v211, 1, v211")
    a("v_and_b32 v212, 3, v211"); a("v_sub_u32 v211, v211, v212"); a("v_lshlrev_b32 v211, 1, v211")
    a(f"v_mul_u32_u24 v212, 16704, v212"); a("v_add_u32 v211, v211, v212"); a("v_add_u32 v211, s45, v211")
    a("v_lshlrev_b32 v212, 4, v3"); a("v_lshlrev_b32 v210, 5, v2"); a("v_sub_u32 v212, v212, v210")
    a(f"v_add_u32 v212, {4064-3584}, v212"); a("v_add_u32 v212, s58, v212")
    a("v_lshl_add_u32 v214, v3, 3, v210"); a(f"v_sub_u32 v215, {4088-3584}, v214"); a("v_add_u32 v215, s58, v215")
    a.emit(a.waitvm("CV"))
    a("ds_write_b16 v208, v4"); a("v_lshlrev_b32 v5, 16, v5")
    a(f"s_add_u32 s49, s49, {WS_ZT}")
    a("s_waitcnt lgkmcnt(0)")
    HB = [64, 128]; GB = [96, 160]; ZA = 32
    def rd(rho):
        it = []
        hb, gb = HB[rho & 1], GB[rho & 1]
        for p in range(8):
            it.append(f"ds_read_b64 v[{hb+4*p}:{hb+4*p+1}], v211 offset:{64*rho+512*p}")
            it.append(f"ds_read_b64 v[{hb+4*p+2}:{hb+4*p+3}], v211 offset:{64*rho+512*p+8}")
            it.append(f"ds_read_b128 v[{gb+4*p}:{gb+4*p+3}], v212 offset:{64*rho+512*(7-p)}")
        return it
    for x in rd(0): a(x)
    mem_plan = {0: d_items(0), 1: h_items(0, 2), 2: d_items(1), 3: sigC() + h_items(2, 4)[:4], 4: h_items(2, 4)[4:] + h_items(4, 5), 5: h_items(5, 6) + h_items(6, 7)[:2], 6: h_items(6, 7)[2:] + h_items(7, 8), 7: []}
    a("s_waitcnt lgkmcnt(0)")
    for rho in range(8):
        hb, gb = HB[rho & 1], GB[rho & 1]
        mf = []; seen = set()
        for p in range(8):
            for q in range(8-p):
                cg = p+q; acc = ZA + 4*cg
                first = rho == 0 and cg not in seen
                seen.add(cg)
                cc = "0" if first else f"v[{acc}:{acc+3}]"
                mf.append(f"v_mfma_f32_16x16x32_bf16 v[{acc}:{acc+3}], v[{hb+4*p}:{hb+4*p+3}], v[{gb+4*q}:{gb+4*q+3}], {cc}")
        G = Gaps(len(mf))
        if rho < 7: G.put_free(rd(rho+1), 0, 28, cap=1)
        else: G.put_free([f"ds_read_b64 v[{64+2*cg}:{65+2*cg}], v215 offset:{512*(7-cg)}" for cg in range(8)], 0, 27, cap=1)
        G.put_free(mem_plan[rho], 0, 34)
        G.put(len(mf)-1, "s_waitcnt lgkmcnt(0)")
        st_ = len(a.L); interleave(a, mf, G.g); fix_m0(a, st_)
    a("s_nop 7"); a("s_nop 1")
    for cg in range(8):
        acc = ZA + 4*cg; u = 64 + 2*cg; T = 96 + 8*(cg & 1)
        a(f"v_and_b32 v{T}, 0xffff0000, v{u+1}"); a(f"v_lshlrev_b32 v{T+1}, 16, v{u+1}")
        a(f"v_and_b32 v{T+2}, 0xffff0000, v{u}"); a(f"v_lshlrev_b32 v{T+3}, 16, v{u}")
        for k in range(4): a(f"v_fmac_f32 v{acc+k}, v{T+k}, v5")
        a(f"v_cvt_pk_bf16_f32 v{T+4}, v{acc}, v{acc+1}"); a(f"v_cvt_pk_bf16_f32 v{T+5}, v{acc+2}, v{acc+3}")
        a.emit(a.vmem(f"buffer_store_dwordx2 v[{T+4}:{T+5}], v214, {WSR}, s49 offen offset:{512*cg} {C.st}", "ZS"))
    a("s_branch P2_START")
    vm_conv = list(a.vm)
    a("NOCONV:")
    a.vm = vm_save
    for rho in range(8): emit_all(a, mem_plan[rho])
    a(f"s_mov_b32 s67, {OOB}")
    for cg in range(8): a.emit(a.vmem(f"buffer_store_dwordx2 v[26:27], v25, {WSR}, s67 offen", "ZS"))
    assert a.vm == vm_conv
    a("P2_START:")
    stamp(a, 11)
    a("v_lshrrev_b32 v208, 2, v1"); a("v_mul_u32_u24 v208, 288, v208"); a("v_and_b32 v209, 3, v1"); a("v_lshl_add_u32 v208, v209, 3, v208")
    a("s_mul_i32 s58, s47, 9216"); a("s_mul_i32 s59, s46, 4608"); a("s_add_u32 s60, s58, s59"); a("v_add_u32 v2, s60, v208")
    a("s_sub_u32 s60, s58, s59"); a("s_add_u32 s60, s60, 4608"); a("v_add_u32 v3, s60, v208")
    for sl in range(1, 4): a(f"v_add_u32 v{2+2*sl}, {sl*36864}, v2") if sl < 2 else None
    RB2 = [(2, 3), (4, 5), (8, 9), (20, 21)]
    a("v_add_u32 v5, 36864, v3"); a("v_add_u32 v8, 73728, v2"); a("v_add_u32 v9, 73728, v3"); a("v_add_u32 v20, 110592, v2"); a("v_add_u32 v21, 110592, v3")
    a("s_lshl_b32 s43, s40, 2"); a("s_add_u32 s43, s43, s41")
    a("s_mul_i32 s45, s42, 144"); a("s_mul_i32 s58, s14, 48"); a("s_add_u32 s45, s45, s58")
    a("s_cmp_lt_u32 s14, 3"); a(f"s_cselect_b32 s61, 0, {OOB}")
    a("s_mul_i32 s50, s14, 3072"); a(f"s_add_u32 s50, s50, {L_ZT}")
    a("s_mul_i32 s100, s42, 288"); a(f"s_add_u32 s100, s100, {F4}")
    a("s_lshl_b32 s58, s2, 3"); a(f"s_add_u32 s58, s58, {F4}"); a("s_cmp_eq_u32 s14, 0"); a(f"s_cselect_b32 s59, s62, {OOB}"); a("s_add_u32 s101, s58, s59")
    a("s_add_u32 s44, s56, 0x4000"); a("s_add_u32 s51, s56, 0x8000")
    srd(a, S_U, P_OUT, SZ_X)
    XV0, XV1, ZD, ZTR, STA, F4A = 250, 251, 252, 253, 254, 255
    fin_addr = ["v_and_b32 v248, 15, v1", "v_lshrrev_b32 v249, 4, v1",
                "s_lshl_b32 s58, s43, 5", f"v_add_u32 v{XV0}, s58, v248", f"v_mul_u32_u24 v{XV0}, 1152, v{XV0}", f"v_lshl_add_u32 v{XV0}, v249, 3, v{XV0}",
                "s_lshl_b32 s58, s45, 1", "s_add_u32 s58, s58, s61", f"v_add_u32 v{XV0}, s58, v{XV0}", f"v_add_u32 v{XV1}, 18432, v{XV0}",
                "s_lshl_b32 s58, s41, 8", f"s_add_u32 s58, s58, {L_STATS}", f"v_lshl_add_u32 v{STA}, v248, 3, s58",
                "v_lshrrev_b32 v248, 2, v1", "v_and_b32 v249, 3, v1", f"v_lshlrev_b32 v{ZTR}, 6, v248", f"v_lshl_add_u32 v{ZTR}, v249, 3, v{ZTR}", f"v_add_u32 v{ZTR}, s50, v{ZTR}",
                f"v_add_u32 v{ZD}, s45, v248", f"v_lshlrev_b32 v{ZD}, 12, v{ZD}", f"v_lshl_add_u32 v{ZD}, v249, 4, v{ZD}", "s_lshl_b32 s58, s43, 6", "s_add_u32 s58, s58, s61", f"v_add_u32 v{ZD}, s58, v{ZD}",
                f"v_min_u32 v{F4A}, 35, v1", f"v_lshlrev_b32 v{F4A}, 3, v{F4A}"]
    NST2 = 9
    allf = []
    for t in range(NST2):
        for n in range(18):
            ksl, b = n // 9, n % 9
            p = 2*t + ksl
            allf.append(dict(t=t, n=n, g=len(allf), ks=p, base=RB2[t % 4], off=ksl*18432 + b*32,
                             mm=[(ACC + (s*9+b)*4, None, areg(p*4+s), p == 0) for s in range(4)]))
    def reads2(f):
        b = B0 + 4*(f["g"] % NB)
        return [a.lds(f"ds_read_b64_tr_b16 v[{b}:{b+1}], v{f['base'][0]} offset:{f['off']}", ("F", f["g"])),
                a.lds(f"ds_read_b64_tr_b16 v[{b+2}:{b+3}], v{f['base'][1]} offset:{f['off']}", ("F", f["g"]))]
    XR, SR = 208, 224
    ZRL = [56, 58, 60, 62, 220, 222]
    ST = 10
    a.lg = []
    a.emit(a.vmem(f"buffer_load_dwordx2 v[22:23], v19, {WSR}, s44 offen sc1", "P3BL"))
    a.emit(a.waitvm(("D", 0))); a("s_barrier")
    for g in range(4):
        for x in reads2(allf[g]): a.emit(x)
    a.emit(a.waitvm(("H", 0))); a.emit(a.waitlg(("F", 1)))
    for t in range(NST2):
        if t in (3, 6): stamp(a, {3: 12, 6: 13}[t])
        fs = [f for f in allf if f["t"] == t]
        post = []; anyw = []; mem = []; late = []; hd = []
        tags = [("D", t+1)]
        if t + 2 < NST2: mem += d_items(t+2)
        if t == 0:
            tags.append("P3BL")
            post += [poll_check(19, 22, "F3B", "s44")] + (h_pf(4, 2, 24) if C.prefetch else []) + [a.vmem(f"buffer_load_dwordx2 v[22:23], v19, {WSR}, s51 offen sc1", "P3CL")]
        if t == 1:
            tags += ["ZS", "P3CL"]
            post += [fl("s101", "FS4"), poll_check(19, 22, "F3C", "s51")] + (h_pf(6, 3, 24) if C.prefetch else [])
        if t == 2: mem = h_items(8, 10) + mem; anyw += fin_addr
        if t == 3: mem = h_items(10, 13) + mem
        if t == 4: mem = [a.vmem(f"buffer_load_dwordx2 v[22:23], v{F4A}, {WSR}, s100 offen sc1", "P4L")] + h_items(13, 16) + mem
        if t == 5:
            mem = h_items(16, 18) + mem
            tags.append("P4L")
            zl = []
            for b in range(3):
                zl.append([f"s_mov_b32 s67, {WS_ZT + b*16*4096}", f"s_add_u32 m0, s50, {b*1024}"])
                zl.append(a.vmem(f"buffer_load_dwordx4 v{ZD}, {WSR}, s67 offen sc1 lds", "ZL"))
            post += [poll_check(F4A, 22, "F4", "s100")] + zl
        if t == 6:
            for u in range(6):
                mem.append(a.vmem(f"buffer_load_dwordx2 v[{XR+2*u}:{XR+2*u+1}], v{XV0+(u&1)}, s[{S_X}:{S_X+3}], 0 offen offset:{32*(u>>1)}", "XL"))
        if t == 7:
            late += [a.lds(f"ds_read_b64 v[{ST+2*s}:{ST+2*s+1}], v{STA} offset:{128*s}", "ST2") for s in range(2)]
            late += [a.waitvm(["ZL", "XL"])]
            for u in range(6):
                late.append(a.lds(f"ds_read_b64_tr_b16 v[{ZRL[u]}:{ZRL[u]+1}], v{ZTR} offset:{(u>>1)*1024+32*(u&1)}", "ZT"))
            late += [a.waitlg(["ZT", "ST2"]), f"v_mul_f32 v{ST}, v{ST}, v{ST+1}", f"v_mul_f32 v{ST+2}, v{ST+2}, v{ST+3}",
                     f"v_mul_f32 v14, v{ST+1}, v{ST+1}", f"v_mul_f32 v15, v{ST+3}, v{ST+3}"]
        if t in (7, 8):
            for u in (range(0, 1) if t == 7 else range(1, 6)):
                s = u & 1
                for k in range(4): late.append(unp(SR+4*u+k, XR+2*u+(k >> 1), k & 1))
                for k in range(4): late.append(f"v_fma_f32 v{SR+4*u+k}, v{SR+4*u+k}, v{ST+1+2*s}, -v{ST+2*s}")
                for k in range(4):
                    late.append(unp(248+(k & 1), ZRL[u]+(k >> 1), k & 1)); late.append(f"v_mul_f32 v{SR+4*u+k}, v{SR+4*u+k}, v{248+(k&1)}")
        run_stage(a, fs, allf, reads2, t, f"P2 stage {t}", [], tags, post=post, early=mem, anyw=anyw, late=late, lo_late=36 if t == 7 else 0, early_frac=0.75,
                  vmwait=lambda f, f1, f2: ("H", f2["ks"]) if f2["ks"] != f["ks"] else None)
    stamp(a, 14)
    a("s_barrier")
    a("s_mul_i32 s60, s14, 18432"); a("v_add_u32 v2, s60, v7")
    a("s_xor_b32 s60, s14, 1"); a("s_mul_i32 s60, s60, 18432"); a("v_add_u32 v3, s60, v7")
    a("s_nop 4")
    for idx in range(18):
        r = ACC + (18+idx)*4
        a(f"ds_write_b128 v2, v[{r}:{r+3}] offset:{idx*1024}")
    a("s_lshl_b32 s60, s40, 2"); a("s_add_u32 s60, s60, s14"); a("s_lshl_b32 s60, s60, 2"); a("s_add_u32 s60, s60, s42")
    a("s_lshl_b32 s59, s60, 7"); a("s_lshl_b32 s58, s41, 3"); a("s_add_u32 s59, s59, s58"); a(f"s_add_u32 s59, s59, {F5}")
    a("s_lshl_b32 s60, s60, 2"); a("s_add_u32 s60, s60, s41"); a("s_mul_i32 s60, s60, 9216"); a(f"s_add_u32 s60, s60, {WS_PART}")
    a("s_waitcnt lgkmcnt(0)"); a("s_barrier")
    for b in range(9):
        for s in range(2):
            r = ACC + (18+s*9+b)*4
            a(f"ds_read_b128 v[{r}:{r+3}], v3 offset:{(s*9+b)*1024}")
    a("s_cmp_eq_u32 s14, s41"); a("s_cbranch_scc1 OWNQ")
    for b in range(9):
        T = 32 + 4*(b % 3)
        a(f"s_waitcnt lgkmcnt({min(15, 16-2*b)})")
        for s in range(2):
            r = ACC + (s*9+b)*4; o = ACC + (18+s*9+b)*4
            for k in range(4): a(f"v_add_f32 v{r+k}, v{r+k}, v{o+k}")
            a(f"v_cvt_pk_bf16_f32 v{T+2*s}, v{r}, v{r+1}"); a(f"v_cvt_pk_bf16_f32 v{T+2*s+1}, v{r+2}, v{r+3}")
        if b and b % 4 == 0: a("s_add_u32 s60, s60, 4096")
        a(f"buffer_store_dwordx4 v[{T}:{T+3}], v7, {WSR}, s60 offen offset:{(b&3)*1024} {C.st}")
    a("s_waitcnt vmcnt(0)")
    a(f"buffer_store_dwordx2 v[26:27], v25, {WSR}, s59 offen sc1")
    a("s_branch OWNQ_DONE")
    a("OWNQ:")
    a(f"buffer_store_dwordx2 v[26:27], v25, {WSR}, s59 offen sc1")
    a(f"v_add_u32 v2, 73728, v7")
    a("s_waitcnt lgkmcnt(0)")
    for b in range(9):
        for s in range(2):
            r = ACC + (s*9+b)*4; o = ACC + (18+s*9+b)*4
            for k in range(4): a(f"v_add_f32 v{r+k}, v{r+k}, v{o+k}")
            a(f"ds_write_b128 v2, v[{r}:{r+3}] offset:{(b*2+s)*1024}")
    a("s_waitcnt lgkmcnt(0)")
    a("OWNQ_DONE:")
    stamp(a, 15)
    a("s_barrier")
    a("s_mul_i32 s58, s14, 6144"); a("s_add_u32 s58, s58, 73728"); a("v_add_u32 v2, s58, v7")
    for u in range(6): a(f"ds_read_b128 v[{64+4*u}:{67+4*u}], v2 offset:{u*1024}")
    a("s_lshl_b32 s60, s43, 2"); a("s_add_u32 s60, s60, s42")
    a("s_lshl_b32 s44, s60, 7"); a(f"s_add_u32 s44, s44, {F5}")
    a("v_and_b32 v19, 3, v1"); a("v_lshlrev_b32 v19, 3, v19")
    a(f"buffer_load_dwordx2 v[22:23], v19, {WSR}, s44 offen sc1"); a("s_waitcnt vmcnt(0)")
    for x in poll_check(19, 22, "F5", "s44"): a(x)
    stamp(a, 16)
    a("s_mul_i32 s60, s60, 36864"); a("s_mul_i32 s58, s14, 3072"); a("s_add_u32 s60, s60, s58"); a(f"s_add_u32 s60, s60, {WS_PART}"); a("s_add_u32 s60, s60, s61")
    for d in range(1, 4):
        a(f"s_add_u32 s58, s41, {d}"); a("s_and_b32 s58, s58, 3"); a("s_mul_i32 s58, s58, 9216"); a(f"s_add_u32 s{52+d}, s58, s60")
    for b in range(3):
        for d in range(1, 4):
            r = 96 + (b*3+d-1)*4
            a(f"buffer_load_dwordx4 v[{r}:{r+3}], v7, {WSR}, s{52+d} offen offset:{b*1024} sc1")
    a("s_mov_b32 s50, 0xbfb8aa3b")
    a("s_waitcnt lgkmcnt(0)")
    for b in range(3):
        a(f"s_waitcnt vmcnt({6-3*b + 2*b})")
        if b == 0: stamp(a, 17)
        for s in range(2):
            u = b*2+s
            O, T = 64+4*u, 136 + 8*(u & 1)
            for d in range(3):
                for k in range(4): a(unp(T+k, 96+(b*3+d)*4 + 2*s + (k >> 1), k & 1))
                for k in range(4): a(f"v_add_f32 v{O+k}, v{O+k}, v{T+k}")
            for k in range(4): a(f"v_mul_f32 v{O+k}, v{O+k}, v{14+s}")
            for k in range(4): a(f"v_mul_f32 v{T+k}, s50, v{O+k}")
            for k in range(4): a(f"v_exp_f32 v{T+k}, v{T+k}")
            for k in range(4): a(f"v_mul_f32 v{O+k}, v{O+k}, v{SR+4*u+k}")
            for k in range(4): a(f"v_add_f32 v{T+k}, 1.0, v{T+k}")
            for k in range(4): a(f"v_rcp_f32 v{T+k}, v{T+k}")
            for k in range(4): a(unp(T+4+k, XR+2*u+(k >> 1), k & 1))
            for k in range(4): a(f"v_fmac_f32 v{T+4+k}, v{O+k}, v{T+k}")
            r = 152 + 2*u
            a(f"v_cvt_pk_bf16_f32 v{r}, v{T+4}, v{T+5}"); a(f"v_cvt_pk_bf16_f32 v{r+1}, v{T+6}, v{T+7}")
            a(f"buffer_store_dwordx2 v[{r}:{r+1}], v{XV0+s}, s[{S_U}:{S_U+3}], 0 offen offset:{32*b}")
    if C.stamp:
        stamp(a, 18)
        a("s_waitcnt vmcnt(0)")
        stamp(a, 19)
        a(f"s_add_u32 s8, s{P_WS}, {WS_STAMP}"); a(f"s_addc_u32 s9, s{P_WS+1}, 0"); a("s_mov_b32 s10, 0x40000"); a("s_mov_b32 s11, 0x20000")
        a("s_lshl_b32 s58, s2, 2"); a("s_add_u32 s58, s58, s14"); a("s_lshl_b32 s58, s58, 8"); a("v_lshlrev_b32 v2, 2, v1")
        a("buffer_store_dword v0, v2, s[8:11], s58 offen")
    a("s_endpgm")
    a("SLOW_NONCE:"); a("s_mov_b32 s98, 0")
    srd(a, S_T, P_DBG, 256)
    a("SLOWL_NONCE:"); a("s_sleep 1")
    a(f"buffer_load_dwordx2 v[216:217], v218, s[{S_T}:{S_T+3}], 0 offen sc1"); a("s_waitcnt vmcnt(0)")
    a("v_readfirstlane_b32 s94, v216"); a("v_readfirstlane_b32 s95, v217"); a("s_add_u32 s98, s98, 1"); a(f"s_cmp_gt_u32 s98, {SPIN}"); a("s_cbranch_scc1 BACK_NONCE")
    a("s_cmp_eq_u32 s94, 0"); a("s_cbranch_scc1 SLOWL_NONCE"); a("s_branch BACK_NONCE")
    emit_slow(a)
    a("K_EXIT:")
    a("s_endpgm")

def build():
    a = Asm()
    a("; @launch grid=(256,1,1) block=(256,1,1) lds=163840")
    a('.amdgcn_target "amdgcn-amd-amdhsa--gfx950"')
    kernel(a)
    return a.text() + kdesc(KN, 512, 256, 102)

if __name__ == "__main__":
    out = sys.argv[1]
    C.stamp = "--stamp" in sys.argv
    C.prefetch = "--nopf" not in sys.argv
    C.fine = "--fine" in sys.argv
    C.stg = "--stg" in sys.argv
    C.ef = 0.95 if "--ef" in sys.argv else 0.62
    for x in sys.argv:
        if x.startswith("--o="): C.opt |= set(x[4:].split(","))
    if "plain" in C.opt: C.st = ""
    open(out, "w").write(build())
```
